```python
import torch

def _softmax(x, axis=-1):
    return torch.softmax(x, dim=axis)
def _gelu(x):
    return torch.nn.functional.gelu(x, approximate="tanh")
def _silu(x):
    return torch.nn.functional.silu(x)
def _sigmoid(x):
    return torch.sigmoid(x)
def _layernorm(x, axis=-1, eps=1e-5):
    m = x.mean(dim=axis, keepdim=True)
    v = x.var(dim=axis, keepdim=True, unbiased=False)
    return (x - m) / torch.sqrt(v + eps)
def _scatter_add(tgt, idx, src, axis=0):
    return tgt.clone().index_add_(axis, idx, src)
def _segment_sum(src, seg, n):
    out = torch.zeros((n,) + src.shape[1:], dtype=src.dtype)
    return out.index_add_(0, seg, src)
def _pad(x, pw):
    flat = tuple(v for pair in reversed(pw) for v in pair)
    return torch.nn.functional.pad(x, flat)

kernel_name = 'interleave_layers__grouped_kv_mqa__mixer_channel_mlp__prompt'

def setup_inputs():

    _w = (lambda a: (lambda t: t.to(torch.bfloat16) if t.is_floating_point() else t)(torch.as_tensor(a)))
    def _A_setup():
        B, S, D, H = 1, 2048, 1024, 32
        Dh = D // H
        return {
            "x": _w((lambda *s: torch.randn(*s, dtype=torch.bfloat16) * 0.05)(B, S, D)),
            "wq": _w((lambda *s: torch.randn(*s, dtype=torch.bfloat16) * 0.05)(D, H * Dh)),
            "wk": _w((lambda *s: torch.randn(*s, dtype=torch.bfloat16) * 0.05)(D, Dh)),
            "wv": _w((lambda *s: torch.randn(*s, dtype=torch.bfloat16) * 0.05)(D, Dh)),
            "wo": _w((lambda *s: torch.randn(*s, dtype=torch.bfloat16) * 0.05)(H * Dh, D)),
        }
    _A_in = _A_setup()

    def _B_setup():
        B, S, D, F = 1, 2048, 1024, 3584
        return {
            "x": _w((lambda *s: torch.randn(*s, dtype=torch.bfloat16) * 0.05)(B, S, D)),
            "w1": _w((lambda *s: torch.randn(*s, dtype=torch.bfloat16) * 3.2)(D, F) * (D ** -0.5)),
            "b1": _w((lambda *s: torch.randn(*s, dtype=torch.bfloat16) * 1.6)(F)),
            "w2": _w((lambda *s: torch.randn(*s, dtype=torch.bfloat16) * 0.8)(F, D) * (F ** -0.5)),
            "b2": _w((lambda *s: torch.randn(*s, dtype=torch.bfloat16) * 0.8)(D)),
        }
    _B_in = _B_setup()

    return {
        "A_x": _A_in["x"],
        "A_wq": _A_in["wq"],
        "A_wk": _A_in["wk"],
        "A_wv": _A_in["wv"],
        "A_wo": _A_in["wo"],
        "B_x": _B_in["x"],
        "B_w1": _B_in["w1"],
        "B_b1": _B_in["b1"],
        "B_w2": _B_in["w2"],
        "B_b2": _B_in["b2"],
    }

def reference(A_x, A_wq, A_wk, A_wv, A_wo, B_x, B_w1, B_b1, B_w2, B_b2):
    def _A_ref(x, wq, wk, wv, wo):
        B, S, D = x.shape
        H = 32
        Dh = D // H
        q = (lambda x, *d: x.permute(*d))((x @ wq).reshape(B, S, H, Dh), 0, 2, 1, 3)
        k = x @ wk
        v = x @ wv
        scores = torch.einsum("bhqd,bkd->bhqk", q, k) * (Dh ** -0.5)
        p = _softmax(scores, axis=-1)
        o = torch.einsum("bhqk,bkd->bhqd", p, v)
        return (lambda x, *d: x.permute(*d))(o, 0, 2, 1, 3).reshape(B, S, H * Dh) @ wo

    def _B_ref(x, w1, b1, w2, b2):
        y = _layernorm(x, axis=-1)
        h = _gelu(torch.einsum("bsd,df->bsf", y, w1) + b1)
        return torch.einsum("bsf,fd->bsd", h, w2) + b2

    x = A_x
    x = x + _A_ref(_layernorm(x, axis=-1), A_wq, A_wk, A_wv, A_wo)
    x = x + _B_ref(_layernorm(x, axis=-1), B_w1, B_b1, B_w2, B_b2)
    x = x + _A_ref(_layernorm(x, axis=-1), A_wq, A_wk, A_wv, A_wo)
    x = x + _B_ref(_layernorm(x, axis=-1), B_w1, B_b1, B_w2, B_b2)
    return x
```

```python
import math, struct, sys

NAME = "interleave_layers__grouped_kv_mqa__mixer_channel_mlp__prompt"
ARG = dict(x=0, wq=8, wk=16, wv=24, wo=32, bx=40, w1=48, b1=56, w2=64, b2=72, out=80, dbg=88, ws=96)
WS_WQ, WS_WO, WS_W1, WS_W2 = 0x0, 0x200000, 0x400000, 0xC00000
WS_WKV, WS_AUGQ, WS_AUGKV, WS_STAMP = 0x1300000, 0x1320000, 0x1330000, 0x1340000
LBASE, LSTRIDE = 0x1400000, 0x1C00000
CSTR = 4352
L_X, L_O, L_X1, L_H = 0x0, 0x400000, 0x800000, 0xC00000
L_KV, L_STA, L_STB, L_CNT = 0x1A00000, 0x1A40000, 0x1A80000, 0x1AC0000
C_X, C_O, C_X1, C_H, C_KV, C_KV2 = 0, 64, 128, 192, 256, 272
WS_SIZE = LBASE + 2 * LSTRIDE
EPS = 1e-5
LOG2E = math.log2(math.e)
K1 = 1024

S_WAVE, S_W4, S_RB, S_CT = 20, 21, 22, 23
SRD_WS, SRD_KV, SRD_OUT, SRD_B = 24, 28, 32, 36
S_L, S_LAYER = 40, 41
S_T0, S_T1, S_T2, S_T3, S_T4, S_T5 = 42, 43, 44, 45, 46, 47
S_CNT, S_SLOT, S_AOFF, S_WOFF, S_KVOFF, S_SEL, S_MASK, S_M0 = 48, 49, 50, 51, 52, 53, 54, 55
S_D0, S_D1, S_SPIN, S_RT = 56, 57, 58, 59
S_MSK = 60
SRD_P = 64
VL16, VZ, VST = 1, 2, 3
RES, WKV = 224, 192

CFG = {}


def f2u(x):
    return struct.unpack("<I", struct.pack("<f", x))[0]


def hexf(x):
    return hex(f2u(x))


class Asm:
    def __init__(self):
        self.l = []
        self.n = 0

    def __call__(self, s=""):
        for line in s.split("\n"):
            line = line.strip()
            if line:
                self.l.append(line if line.endswith(":") or line.startswith(".") else "    " + line)

    def label(self, base):
        self.n += 1
        return f".L{base}_{self.n}"

    def text(self):
        return "\n".join(self.l)


class Rec(list):
    def __call__(self, s=""):
        self.extend(x.strip() for x in s.split("\n") if x.strip())


def vr(a, n=1):
    return f"v{a}" if n == 1 else f"v[{a}:{a+n-1}]"


def sr(a, n=1):
    return f"s{a}" if n == 1 else f"s[{a}:{a+n-1}]"


WSD = sr(SRD_WS, 4)


def m16(d, a, b, c=None):
    return f"v_mfma_f32_16x16x32_bf16 {vr(d,4)}, {vr(a,4)}, {vr(b,4)}, {c or vr(d,4)}"


def m32(d, a, b, c=None):
    return f"v_mfma_f32_32x32x16_bf16 {vr(d,16)}, {vr(a,4)}, {vr(b,4)}, {c or vr(d,16)}"


def make_srd(e, dst, src, size):
    e(f"s_mov_b32 s{dst}, s{src}")
    e(f"s_mov_b32 s{dst+1}, s{src+1}")
    e(f"s_mov_b32 s{dst+2}, {hex(size)}")
    e(f"s_mov_b32 s{dst+3}, 0x20000")


def stamp(e, i):
    if not CFG.get("stamps"):
        return
    e("s_memrealtime s[80:81]")
    e("s_memtime s[82:83]")
    e(f"s_lshl_b32 s84, s{S_LAYER}, 4")
    e(f"s_add_u32 m0, s84, {i}")
    e("s_waitcnt lgkmcnt(0)")
    e(f"v_writelane_b32 v{VST}, s80, m0")
    e("s_add_u32 m0, m0, 32")
    e(f"v_writelane_b32 v{VST}, s82, m0")


def stamp_flush(e):
    if not CFG.get("stamps"):
        return
    e("s_lshl_b32 s80, s2, 3")
    e(f"s_add_u32 s80, s80, s{S_WAVE}")
    e("s_lshl_b32 s80, s80, 8")
    e(f"s_add_u32 s80, s80, {hex(WS_STAMP)}")
    e("v_lshlrev_b32 v4, 2, v0")
    e(f"buffer_store_dword v{VST}, v4, {WSD}, s80 offen")


def cnt_off(e, dst, base, idx_sgpr, nxt=False):
    e(f"s_mul_i32 s{dst}, s{idx_sgpr}, {CSTR}")
    e(f"s_add_u32 s{dst}, s{dst}, s{S_L}")
    e(f"s_add_u32 s{dst}, s{dst}, {hex(L_CNT + CSTR*base + (LSTRIDE if nxt else 0))}")


VSIG = 15


def signal(e, base, idx_sgpr, nxt=False):
    cnt_off(e, S_T5, base, idx_sgpr, nxt)
    e(f"v_mov_b32 v{VSIG}, 1")
    e("s_waitcnt vmcnt(0)")
    e("s_mov_b64 exec, 1")
    e(f"buffer_atomic_add v{VSIG}, v{VZ}, {WSD}, s{S_T5} offen sc0 sc1")
    e("s_mov_b64 exec, -1")


def poll(e, target, signalled):
    lp, ok = e.label("poll"), e.label("pollok")
    e(f"s_mov_b32 s{S_SPIN}, 0x40000")
    e("s_mov_b64 exec, 1")
    if signalled:
        e("s_waitcnt vmcnt(0)")
        e(f"v_cmp_gt_u32 vcc, {target-1}, v{VSIG}")
        e(f"s_cbranch_vccz {ok}")
    e(f"{lp}:")
    e(f"v_mov_b32 v{VSIG}, 0")
    e(f"buffer_atomic_add v{VSIG}, v{VZ}, {WSD}, s{S_T5} offen sc0 sc1")
    e("s_waitcnt vmcnt(0)")
    e(f"v_cmp_gt_u32 vcc, {target}, v{VSIG}")
    e(f"s_cbranch_vccz {ok}")
    e(f"s_sub_u32 s{S_SPIN}, s{S_SPIN}, 1")
    e(f"s_cbranch_scc0 {lp}")
    e(f"{ok}:")
    e("s_mov_b64 exec, -1")


def split3(e, z, rem, rem2, tmp):
    e(f"v_and_b32 v{tmp}, s{S_MASK}, v{z}")
    e(f"v_sub_f32 v{rem}, v{z}, v{tmp}")
    e(f"v_and_b32 v{tmp}, s{S_MASK}, v{rem}")
    e(f"v_sub_f32 v{rem2}, v{rem}, v{tmp}")


def pack_hi(e, d, lo, hi):
    e(f"v_perm_b32 v{d}, v{hi}, v{lo}, s{S_SEL}")


def stats_loads(e, ST, base, rt_sgpr, vtmp):
    e(f"s_lshl_b32 s{S_T4}, s{rt_sgpr}, 12")
    e(f"s_add_u32 s{S_T4}, s{S_T4}, s{S_L}")
    e(f"s_add_u32 s{S_T4}, s{S_T4}, {hex(base)}")
    e(f"v_lshlrev_b32 v{vtmp}, 2, v0")
    for c in range(16):
        e(f"buffer_load_dword v{ST+c}, v{vtmp}, {WSD}, s{S_T4} offen offset:{256*c} sc1")


def ln_scalars(e, ST, double):
    for w in (8, 4, 2, 1):
        for c in range(w):
            e(f"v_add_f32 v{ST+c}, v{ST+c}, v{ST+c+w}")
    e(f"v_mov_b32 v{ST+1}, v{ST}")
    e("s_nop 1")
    e(f"v_permlane32_swap_b32 v{ST}, v{ST+1}")
    e(f"v_mul_f32 v{ST+2}, {hexf(-1.0/1024)}, v{ST}")
    e(f"v_mul_f32 v{ST+4}, {hexf(1.0/1024)}, v{ST+1}")
    e(f"v_fma_f32 v{ST+4}, -v{ST+2}, v{ST+2}, v{ST+4}")
    e(f"v_max_f32 v{ST+4}, 0, v{ST+4}")
    e(f"v_add_f32 v{ST+5}, {hexf(EPS)}, v{ST+4}")
    e(f"v_rsq_f32 v{ST+3}, v{ST+5}")
    e("s_nop 0")
    if double:
        e(f"v_mul_f32 v{ST+5}, v{ST+3}, v{ST+3}")
        e(f"v_mul_f32 v{ST+5}, v{ST+5}, v{ST+4}")
        e(f"v_add_f32 v{ST+5}, {hexf(EPS)}, v{ST+5}")
        e(f"v_rsq_f32 v{ST+5}, v{ST+5}")
        e("s_nop 0")
        e(f"v_mul_f32 v{ST+3}, v{ST+3}, v{ST+5}")


def spread(e, pairs):
    for a, b in pairs:
        e(f"v_mov_b32 v{b}, v{a}")
    e("s_nop 1")
    for a, b in pairs:
        e(f"v_permlane16_swap_b32 v{a}, v{b}")


def xaug(e, ST, XA, bias):
    split3(e, ST + 2, ST + 8, ST + 9, ST + 10)
    pack_hi(e, XA, ST + 2, ST + 8)
    pack_hi(e, XA + 2, ST + 9, ST + 2)
    pairs = [(XA, XA + 4), (XA + 2, XA + 6)]
    if bias:
        e(f"v_rcp_f32 v{ST+6}, v{ST+3}")
        e("s_nop 0")
        split3(e, ST + 6, ST + 8, ST + 9, ST + 10)
        pack_hi(e, ST + 11, ST + 6, ST + 8)
        e(f"v_lshrrev_b32 v{ST+13}, 16, v{ST+9}")
        pairs += [(ST + 11, ST + 12), (ST + 13, ST + 14)]
    spread(e, pairs)
    e(f"v_mov_b32 v{XA+1}, v{XA}")
    e(f"v_mov_b32 v{XA+5}, v{XA+4}")
    if bias:
        e("v_cmp_gt_u32 vcc, 32, v0")
        e("s_nop 1")
        e(f"v_cndmask_b32 v{XA+3}, 0, v{ST+13}, vcc")
        e(f"v_cndmask_b32 v{XA+7}, 0, v{ST+14}, vcc")
        e("v_cmp_gt_u32 vcc, 16, v0")
        e("s_nop 1")
        e(f"v_cndmask_b32 v{XA+3}, v{XA+3}, v{ST+11}, vcc")
        e(f"v_cndmask_b32 v{XA+7}, v{XA+7}, v{ST+12}, vcc")
    else:
        e(f"v_mov_b32 v{XA+3}, 0")
        e(f"v_mov_b32 v{XA+7}, 0")


def tf_soff(e, dst, base, kbtot, kbper, nxt=False):
    e(f"s_mul_i32 s{dst}, s{S_RB}, {kbtot}")
    if kbper:
        e(f"s_mul_i32 s{S_T4}, s{S_CT}, {kbper}")
        e(f"s_add_u32 s{dst}, s{dst}, s{S_T4}")
    e(f"s_lshl_b32 s{dst}, s{dst}, 2")
    e(f"s_add_u32 s{dst}, s{dst}, s{S_W4}")
    e(f"s_lshl_b32 s{dst}, s{dst}, 11")
    e(f"s_add_u32 s{dst}, s{dst}, s{S_L}")
    off = base + (LSTRIDE if nxt else 0)
    if off:
        e(f"s_add_u32 s{dst}, s{dst}, {hex(off)}")


def pack_pair(e, src, dst):
    for a in range(2):
        for u in range(2):
            for r in range(2):
                s = src + 8 * u + 4 * a + 2 * r
                e(f"v_cvt_pk_bf16_f32 v{dst+4*a+2*u+r}, v{s}, v{s+1}")


def stats_out(e, SRC, T, base, nxt=False, sc="sc1"):
    for a in range(2):
        s, q = T + 4 * a, T + 4 * a + 2
        regs = [SRC + 8 * u + 4 * a + 2 * r for u in range(4) for r in range(2)]
        e(f"v_pk_add_f32 {vr(s,2)}, {vr(regs[0],2)}, {vr(regs[1],2)}")
        e(f"v_pk_mul_f32 {vr(q,2)}, {vr(regs[0],2)}, {vr(regs[0],2)}")
        e(f"v_pk_fma_f32 {vr(q,2)}, {vr(regs[1],2)}, {vr(regs[1],2)}, {vr(q,2)}")
        for x in regs[2:]:
            e(f"v_pk_add_f32 {vr(s,2)}, {vr(s,2)}, {vr(x,2)}")
            e(f"v_pk_fma_f32 {vr(q,2)}, {vr(x,2)}, {vr(x,2)}, {vr(q,2)}")
    for k in range(4):
        e(f"v_add_f32 v{T+2*k}, v{T+2*k}, v{T+2*k+1}")
    e(f"s_lshl_b32 s{S_T4}, s{S_RT}, 4")
    e(f"s_add_u32 s{S_T4}, s{S_T4}, s{S_CT}")
    e(f"v_permlane16_swap_b32 v{T}, v{T+4}")
    e(f"v_permlane16_swap_b32 v{T+2}, v{T+6}")
    e(f"v_add_f32 v{T}, v{T}, v{T+4}")
    e(f"v_add_f32 v{T+2}, v{T+2}, v{T+6}")
    e(f"s_lshl_b32 s{S_T4}, s{S_T4}, 8")
    e(f"s_add_u32 s{S_T4}, s{S_T4}, s{S_L}")
    e(f"v_permlane32_swap_b32 v{T}, v{T+2}")
    e(f"s_add_u32 s{S_T4}, s{S_T4}, {hex(base + (LSTRIDE if nxt else 0))}")
    e(f"v_lshlrev_b32 v{T+8}, 2, v0")
    e(f"v_add_f32 v{T}, v{T}, v{T+2}")
    e(f"buffer_store_dword v{T}, v{T+8}, {WSD}, s{S_T4} offen {sc}")


def rm_voff(e, v, tmp):
    e(f"s_lshl_b32 s{S_T0}, s{S_RT}, 16")
    e(f"s_lshl_b32 s{S_T1}, s{S_CT}, 7")
    e(f"s_add_u32 s{S_T0}, s{S_T0}, s{S_T1}")
    e(f"v_and_b32 v{v}, 15, v0")
    e(f"v_lshl_add_u32 v{v}, v{v}, 11, s{S_T0}")
    e(f"v_bfe_u32 v{tmp}, v0, 4, 1")
    e(f"v_lshl_add_u32 v{v}, v{tmp}, 5, v{v}")
    e(f"v_lshrrev_b32 v{tmp}, 5, v0")
    e(f"v_lshl_add_u32 v{v}, v{tmp}, 4, v{v}")


class DLoop:
    def __init__(self, ACC, NWF, AR, DA, WR, NB, LA):
        self.ACC, self.NWF, self.AR, self.DA, self.WR, self.NB, self.LA = ACC, NWF, AR, DA, WR, NB, LA

    def aload(self, e, slot):
        for a in range(2):
            r = self.AR + 8 * slot + 4 * a
            e(f"buffer_load_dwordx4 {vr(r,4)}, v{VL16}, {WSD}, s{S_AOFF} offen offset:{1024*a} sc1")
        e(f"s_add_u32 s{S_AOFF}, s{S_AOFF}, 8192")

    def wdst(self, f):
        return self.WR + 4 * (f % self.NB)

    def step(self, e, f0, areg, vm, wread, reload_slot=None, pre=None, fill=None, nfill=2):
        for u in range(self.NWF):
            f = f0 + u
            if pre and f in pre:
                pre[f]()
            pend = sum(wread(x) is not None for x in range(f + 1, f + self.LA))
            if u == 0 and vm is not None:
                e(f"s_waitcnt vmcnt({vm}) lgkmcnt({pend})")
            else:
                e(f"s_waitcnt lgkmcnt({pend})")
            order = (0, 1) if u % 2 == 0 else (1, 0)
            e(m16(self.ACC + 8 * u + 4 * order[0], self.wdst(f), areg + 4 * order[0]))
            r = wread(f + self.LA)
            if r:
                e(r)
            e(m16(self.ACC + 8 * u + 4 * order[1], self.wdst(f), areg + 4 * order[1]))
            if fill:
                for _ in range(min(nfill, len(fill))):
                    e(fill.pop(0))
        if reload_slot is not None:
            self.aload(e, reload_slot)


def resident_gemm(e, ACC, bar_at, tail_loads=None, ntail=0, fill=None):
    AR, DA, WR, NB, LA = 48, 8, 112, 8, CFG.get("la_res", 5)
    d = DLoop(ACC, 4, AR, DA, WR, NB, LA)
    VW1 = 6
    e(f"v_add_u32 v{VW1}, 0x10000, v{VL16}")

    def wread(f):
        if f >= 128:
            return None
        return f"ds_read_b128 {vr(d.wdst(f),4)}, v{VL16 if f < 64 else VW1} offset:{(f % 64)*1024}"

    for s in range(DA):
        d.aload(e, s)
    for f in range(LA):
        e(wread(f))
    pre = {bar_at - LA: lambda: e("s_barrier")} if bar_at is not None else {}
    for k in range(32):
        tail = k >= 32 - DA
        if k == 32 - DA and tail_loads:
            tail_loads()
        vm = 2 * (31 - k) + ntail if tail else 2 * (DA - 1)
        d.step(e, 4 * k, AR + 8 * (k % DA), vm, wread, None if tail else k % DA, pre,
               fill if k >= 28 else None, 4)
    if fill:
        for x in fill:
            e(x)


def ring_gemm(e, d, SPS, NS, RW, VW, extra, tail_loads=None, ntail=0, fill=None, XA=None):
    nfr, wst = d.NWF * SPS, 28 * K1
    LA, DA = d.LA, d.DA
    unroll = 1
    while (unroll * SPS) % DA:
        unroll += 1
    assert unroll * SPS == DA and NS % unroll == 0 and nfr % d.NB == 0
    e(f"v_mov_b32 v{VW}, v{VL16}")
    e(f"s_mov_b32 s{S_SLOT}, 0")
    e(f"s_mov_b32 s{S_D0}, {hex((-(RW-1)*wst) & 0xffffffff)}")
    e(f"s_mov_b32 s{S_D1}, {wst}")
    for s in range(DA):
        d.aload(e, s)
    e("s_barrier")

    def rd(f):
        return f"ds_read_b128 {vr(d.wdst(f),4)}, v{VW} offset:{(f % nfr)*1024}"

    def advance():
        e(f"s_add_u32 s{S_SLOT}, s{S_SLOT}, {wst}")
        e(f"s_cmp_eq_u32 s{S_SLOT}, {RW*wst}")
        e(f"s_cselect_b32 s{S_SLOT}, 0, s{S_SLOT}")
        e(f"s_cselect_b32 s{S_T0}, s{S_D0}, s{S_D1}")
        e(f"v_add_u32 v{VW}, s{S_T0}, v{VW}")
        e("s_barrier")

    for f in range(LA):
        e(rd(f))
    e(f"s_movk_i32 s{S_CNT}, {NS//unroll - 1}")
    lp = e.label("ring")
    e(".p2align 3")
    e(f"{lp}:")
    pre = {(st + 1) * nfr - LA: advance for st in range(unroll)}
    for k in range(DA):
        d.step(e, k * d.NWF, d.AR + 8 * k, 2 * (DA - 1), rd, k, pre)
    e(f"s_sub_u32 s{S_CNT}, s{S_CNT}, 1")
    e(f"s_cmp_lg_u32 s{S_CNT}, 0")
    e(f"s_cbranch_scc1 {lp}")
    lim = unroll * nfr + (d.NWF if extra else 0)
    rdt = lambda f: rd(f) if f < lim else None
    if not extra:
        del pre[unroll * nfr - LA]
    if tail_loads:
        tail_loads()
    for k in range(DA):
        d.step(e, k * d.NWF, d.AR + 8 * k, 2 * (DA - 1 - k) + ntail, rdt, None, pre, fill if k >= DA - 2 else None, 3)
    if fill:
        for x in fill:
            e(x)
    if extra:
        e("s_nop 1")
        d.step(e, DA * d.NWF, XA, None, rdt)


def dma_run(e, n, lds_imm, thr=None):
    for i in range(n):
        if i % 4 == 0:
            e(f"s_add_u32 m0, s{S_M0}, {lds_imm + i*1024}")
            e(f"s_add_u32 s{S_T0}, s{S_WOFF}, {i*1024}")
        if thr is not None:
            e(f"s_waitcnt vmcnt({thr})")
        e(f"buffer_load_dwordx4 v{VL16}, {WSD}, s{S_T0} offen offset:{(i % 4)*1024} lds")


def ring_loader(e, base, panel, NS, RW, extra):
    wst = 28 * K1
    thr = CFG.get("thr")
    e(f"s_mul_i32 s{S_M0}, s{S_W4}, 7168")
    e(f"s_mul_i32 s{S_WOFF}, s{S_CT}, {panel}")
    e(f"s_add_u32 s{S_WOFF}, s{S_WOFF}, s{S_M0}")
    e(f"s_add_u32 s{S_WOFF}, s{S_WOFF}, {hex(base)}")
    last = NS if extra else NS - 1
    cnt = lambda s: 7 if s < NS else 4
    issued = []

    def issue(s, t):
        if s == NS:
            e(f"s_mul_i32 s{S_T1}, s{S_W4}, 3072")
            e(f"s_sub_u32 s{S_M0}, s{S_M0}, s{S_T1}")
            e(f"s_sub_u32 s{S_WOFF}, s{S_WOFF}, s{S_T1}")
        dma_run(e, cnt(s), (s % RW) * wst, t)
        e(f"s_add_u32 s{S_WOFF}, s{S_WOFF}, {wst}")
        issued.append(s)

    for s in range(RW):
        issue(s, CFG.get("thr_pre"))
    for s in range(last + 1):
        e(f"s_waitcnt vmcnt({sum(cnt(x) for x in issued if x > s)})")
        e("s_barrier")
        if s >= 2 and s - 2 + RW <= last:
            issue(s - 2 + RW, thr)


AQ, AONE, AL, AO, AK, AV, AS = 16, 32, 36, 44, 76, 92, 108
AIDX, AVB, AOA = 7, 8, 9
LDS_QX, LDS_KVX, LDS_RING = 128 * K1, 144 * K1, 96 * K1


def kv_piece(e):
    XF, ST, ACC, AUG, XA, T = 16, 48, 64, 72, 80, 88
    e(f"s_lshr_b32 s{S_T2}, s{S_CT}, 2")
    e(f"s_lshl_b32 s{S_T3}, s{S_RB}, 2")
    e(f"s_add_u32 s{S_T3}, s{S_T3}, s{S_T2}")
    skip = e.label("nox")
    e(f"s_cmp_eq_u32 s{S_LAYER}, 0")
    e(f"s_cbranch_scc1 {skip}")
    cnt_off(e, S_T5, C_X, S_T3)
    poll(e, 16, False)
    e(f"{skip}:")
    e(f"s_lshl_b32 s{S_T0}, s{S_RB}, 2")
    e(f"s_add_u32 s{S_T0}, s{S_T0}, s{S_W4}")
    e(f"s_lshl_b32 s{S_T0}, s{S_T0}, 6")
    e(f"s_lshr_b32 s{S_T1}, s{S_CT}, 1")
    e(f"s_add_u32 s{S_T0}, s{S_T0}, s{S_T1}")
    e(f"s_lshl_b32 s{S_T0}, s{S_T0}, 10")
    e(f"s_add_u32 s{S_T0}, s{S_T0}, s{S_L}")
    stats_loads(e, ST, L_STA, S_T3, 4)
    for i in range(8):
        e(f"buffer_load_dwordx4 {vr(XF+4*i,4)}, v{VL16}, {WSD}, s{S_T0} offen sc1")
        e(f"s_add_u32 s{S_T0}, s{S_T0}, 8192")
    e(f"s_and_b32 s{S_T0}, s{S_CT}, 1")
    e(f"s_lshl_b32 s{S_T0}, s{S_T0}, 11")
    e(f"s_add_u32 s{S_T0}, s{S_T0}, {hex(WS_AUGKV)}")
    for u in range(2):
        e(f"buffer_load_dwordx4 {vr(AUG+4*u,4)}, v{VL16}, {WSD}, s{S_T0} offen offset:{1024*u}")
    e("s_waitcnt vmcnt(10)")
    ln_scalars(e, ST, False)
    xaug(e, ST, XA, False)
    spread(e, [(ST + 3, ST + 4)])
    e(f"s_bitcmp1_b32 s{S_CT}, 1")
    e(f"s_cselect_b64 {sr(S_MSK,2)}, -1, 0")
    for i in range(3):
        e(f"v_cndmask_b32 v{XA+i}, v{XA+i}, v{XA+4+i}, {sr(S_MSK,2)}")
    e(f"v_cndmask_b32 v{ST+4}, v{ST+3}, v{ST+4}, {sr(S_MSK,2)}")
    for i in range(8):
        e(f"s_waitcnt vmcnt({9-i})")
        for u in range(2):
            e(m16(ACC + 4 * u, WKV + 8 * i + 4 * u, XF + 4 * i, "0" if i == 0 else None))
    noaug = e.label("noaug")
    e("s_waitcnt vmcnt(0)")
    e(f"s_cmp_lg_u32 s{S_W4}, 0")
    e(f"s_cbranch_scc1 {noaug}")
    for u in range(2):
        e(m16(ACC + 4 * u, AUG + 4 * u, XA))
    e(f"{noaug}:")
    e(f"s_lshl_b32 s{S_T0}, s{S_W4}, 11")
    e(f"s_add_u32 s{S_T0}, s{S_T0}, {LDS_KVX}")
    e(f"v_add_u32 v4, s{S_T0}, v{VL16}")
    e(f"v_mov_b32 v5, {LDS_KVX + 10*K1}")
    e("v_mov_b32 v6, 1")
    e("s_nop 3")
    for i in range(0, 8, 2):
        e(f"v_pk_mul_f32 {vr(ACC+i,2)}, {vr(ACC+i,2)}, {vr(ST+4,2)} op_sel_hi:[1,0]")
    for u in range(2):
        e(f"ds_write_b128 v4, {vr(ACC+4*u,4)} offset:{1024*u}")
    e("s_waitcnt lgkmcnt(0)")
    e("s_mov_b64 exec, 1")
    e("ds_add_rtn_u32 v6, v5, v6")
    e("s_waitcnt lgkmcnt(0)")
    e(f"v_readfirstlane_b32 s{S_T0}, v6")
    e("s_mov_b64 exec, -1")
    done, isv, fin = e.label("kvdone"), e.label("isv"), e.label("kvfin")
    e(f"s_cmp_lg_u32 s{S_T0}, 3")
    e(f"s_cbranch_scc1 {done}")
    e(f"v_add_u32 v4, {LDS_KVX}, v{VL16}")
    for j in range(8):
        e(f"ds_read_b128 {vr(XF+4*j,4)}, v4 offset:{1024*j}")
    e(f"s_lshl_b32 s{S_T0}, s{S_T3}, 12")
    e(f"s_add_u32 s{S_T0}, s{S_T0}, s{S_L}")
    e(f"s_add_u32 s{S_T0}, s{S_T0}, {hex(L_KV)}")
    e(f"s_bfe_u32 s{S_T1}, s{S_CT}, 0x10001")
    e("s_waitcnt lgkmcnt(0)")
    for w in (16, 8):
        for i in range(0, w, 2):
            e(f"v_pk_add_f32 {vr(XF+i,2)}, {vr(XF+i,2)}, {vr(XF+i+w,2)}")
    for r in range(4):
        e(f"v_cvt_pk_bf16_f32 v{T+r}, v{XF+2*r}, v{XF+2*r+1}")
    e("v_and_b32 v4, 15, v0")
    e("v_bfe_u32 v5, v0, 4, 1")
    e("v_lshrrev_b32 v6, 5, v0")
    e(f"s_bitcmp1_b32 s{S_CT}, 0")
    e(f"s_cbranch_scc1 {isv}")
    e(f"s_lshl_b32 s{S_T1}, s{S_T1}, 8")
    e(f"s_add_u32 s{S_T0}, s{S_T0}, s{S_T1}")
    e("v_lshlrev_b32 v4, 4, v4")
    e("v_lshl_add_u32 v4, v5, 10, v4")
    e("v_lshl_add_u32 v4, v6, 9, v4")
    e(f"buffer_store_dwordx4 {vr(T,4)}, v4, {WSD}, s{S_T0} offen sc1")
    e(f"s_branch {fin}")
    e(f"{isv}:")
    e(f"s_lshl_b32 s{S_T1}, s{S_T1}, 10")
    e(f"s_add_u32 s{S_T0}, s{S_T0}, s{S_T1}")
    e("v_lshlrev_b32 v4, 6, v4")
    e("v_lshrrev_b32 v10, 4, v0")
    e("v_lshl_add_u32 v4, v10, 3, v4")
    e(f"v_add_u32 v4, {LDS_KVX + 8*K1}, v4")
    e(f"ds_write_b64 v4, {vr(T,2)}")
    e(f"ds_write_b64 v4, {vr(T+2,2)} offset:32")
    e("v_bfe_u32 v4, v0, 2, 2")
    e("v_lshl_add_u32 v4, v6, 3, v4")
    e("v_lshlrev_b32 v4, 6, v4")
    e("v_lshl_add_u32 v4, v5, 5, v4")
    e("v_and_b32 v10, 3, v0")
    e("v_lshl_add_u32 v4, v10, 3, v4")
    e(f"v_add_u32 v4, {LDS_KVX + 8*K1}, v4")
    e("s_waitcnt lgkmcnt(0)")
    e(f"ds_read_b64_tr_b16 {vr(T+4,2)}, v4")
    e(f"ds_read_b64_tr_b16 {vr(T+6,2)}, v4 offset:256")
    e("s_waitcnt lgkmcnt(0)")
    e(f"buffer_store_dwordx4 {vr(T+4,4)}, v{VL16}, {WSD}, s{S_T0} offen offset:2048 sc1")
    e(f"{fin}:")
    signal(e, C_KV, S_RB)
    e("v_and_b32 v4, 15, v0")
    e(f"v_mul_u32_u24 v4, {CSTR}, v4")
    e("v_mov_b32 v5, 1")
    e(f"s_add_u32 s{S_T5}, s{S_L}, {hex(L_CNT + CSTR*C_KV2)}")
    e("s_waitcnt vmcnt(0)")
    e(f"v_readfirstlane_b32 s{S_T0}, v{VSIG}")
    e("s_nop 0")
    e(f"s_cmp_lg_u32 s{S_T0}, 15")
    e(f"s_cbranch_scc1 {done}")
    e("s_mov_b64 exec, 0xffff")
    e(f"buffer_atomic_add v5, v4, {WSD}, s{S_T5} offen sc1")
    e("s_mov_b64 exec, -1")
    e(f"{done}:")


def attention(e):
    slot_addr = lambda c: ((c + 3) % 4) * 16 * K1

    def kvdma(c):
        e(f"s_add_u32 m0, s{S_M0}, {LDS_RING + slot_addr(c)}")
        e("s_nop 0")
        for i in range(2):
            e(f"buffer_load_dwordx4 v{VL16}, {sr(SRD_KV,4)}, s{S_KVOFF} offen offset:{1024*i} sc1 lds")
        e(f"s_add_u32 s{S_KVOFF}, s{S_KVOFF}, 16384")

    e(f"s_lshl_b32 s{S_M0}, s{S_WAVE}, 11")
    e(f"s_add_u32 s{S_KVOFF}, s{S_M0}, 16384")
    kvdma(1)
    kvdma(2)
    e(f"s_lshr_b32 s{S_T0}, s{S_WAVE}, 2")
    e(f"s_lshl_b32 s{S_T0}, s{S_T0}, 13")
    e(f"s_add_u32 s{S_T0}, s{S_T0}, {LDS_RING}")
    e(f"v_add_u32 v{AVB}, s{S_T0}, v{VL16}")

    def toff(T):
        return slot_addr(T // 2) + (T % 2) * 4096

    rdk = lambda T, m: f"ds_read_b128 {vr(AK+8*(T % 2)+4*m,4)}, v{AVB} offset:{toff(T)+1024*m}"
    rdv = lambda T, m: f"ds_read_b128 {vr(AV+8*(T % 2)+4*m,4)}, v{AVB} offset:{toff(T)+2048+1024*m}"
    s32 = lambda d, a, b: f"v_smfmac_f32_32x32x32_bf16 {vr(d,16)}, {vr(a,4)}, {vr(b,8)}, v{AIDX}"
    s16 = lambda d, a, b: f"v_smfmac_f32_16x16x64_bf16 {vr(d,4)}, {vr(a,4)}, {vr(b,8)}, v{AIDX}"
    for m in range(2):
        e(rdk(0, m))
    for m in range(2):
        e(rdk(1, m))
    for m in range(2):
        e(rdv(0, m))
    e(f"s_lshl_b32 s{S_SLOT}, s{S_WAVE}, 10")
    e(f"s_lshl_b32 s{S_WOFF}, s{S_CT}, 17")
    e(f"s_add_u32 s{S_WOFF}, s{S_WOFF}, s{S_SLOT}")
    e(f"s_add_u32 s{S_WOFF}, s{S_WOFF}, {hex(WS_WO)}")
    e(f"v_mov_b32 v{AIDX}, 0xdddd")
    e("v_bfe_u32 v4, v0, 2, 1")
    e("v_cmp_eq_u32 vcc, 0, v4")
    e("v_mov_b32 v5, 0x3f803f80")
    for i in list(range(AL, AK)) + list(range(AV + 8, AV + 16)) + list(range(AS + 48, AS + 64)):
        e(f"v_mov_b32 v{i}, 0")
    e(f"v_cndmask_b32 v{AONE}, 0, v5, vcc")
    e(f"v_cndmask_b32 v{AONE+1}, 0, v5, vcc")
    e(f"v_xor_b32 v{AONE+2}, v5, v{AONE}")
    e(f"v_xor_b32 v{AONE+3}, v5, v{AONE}")
    e("s_waitcnt lgkmcnt(0)")
    e(m32(AS, AK, AQ, "0"))
    e(m32(AS, AK + 4, AQ + 4))
    e(f"s_movk_i32 s{S_CNT}, 4")
    e("s_nop 9")
    lp = e.label("att")
    e(".p2align 3")
    e(f"{lp}:")
    wo_in = lambda c: c % 4 != 3
    for u in range(16):
        sc, sn, sp = AS + 16 * (u % 4), AS + 16 * ((u + 1) % 4), AS + 16 * ((u + 3) % 4)
        hn, hp, tn, tp = (u + 1) % 2, (u - 1) % 2, (u + 1) // 2, (u - 1) // 2
        kb, vb = AK + 8 * (tn % 2), AV + 8 * (tp % 2)
        q, o, l = AQ + 8 * hn, AO + 16 * hp, AL + 4 * hp
        ex = [f"v_exp_f32 v{sc+i}, v{sc+i}" for i in range(16)]
        odd = u % 2 == 1
        rk = [rdk((tn + 1) % 8, m) for m in range(2)] if odd else ["", ""]
        rv = [rdv((tp + 1) % 8, m) for m in range(2)] if odd else ["", ""]
        if u % 4 == 1:
            c = u // 4
            e(f"s_waitcnt vmcnt({2 + (1 if wo_in(c - 1) else 0)}) lgkmcnt(0)")
            e("s_barrier")
        elif odd:
            e("s_waitcnt lgkmcnt(0)")
        if CFG.get("attprio"):
            e(f"s_setprio {3 - (u - 1) % 4}")
        e(m32(sn, kb, q, "0"))
        if u % 4 == 1:
            if wo_in(c):
                e(f"s_mov_b32 m0, s{S_SLOT}")
                e(f"s_add_u32 s{S_SLOT}, s{S_SLOT}, 8192")
                e(f"buffer_load_dwordx4 v{VL16}, {WSD}, s{S_WOFF} offen lds")
                e(f"s_add_u32 s{S_WOFF}, s{S_WOFF}, 8192")
            kvdma(c + 3)
        e(rk[0])
        for x in ex[0:3]:
            e(x)
        e(s32(o, vb, sp))
        e(rk[1])
        for x in ex[3:6]:
            e(x)
        e(s16(l, AONE, sp))
        for x in ex[6:8]:
            e(x)
        e(m32(sn, kb + 4, q + 4))
        e(rv[0])
        for x in ex[8:11]:
            e(x)
        e(s32(o, vb + 4, sp + 8))
        e(rv[1])
        for x in ex[11:14]:
            e(x)
        e(s16(l, AONE, sp + 8))
        for x in ex[14:16]:
            e(x)
    e(f"s_sub_u32 s{S_CNT}, s{S_CNT}, 1")
    e(f"s_cmp_lg_u32 s{S_CNT}, 0")
    e(f"s_cbranch_scc1 {lp}")
    sp = AS + 48
    if CFG.get("attprio"):
        e("s_setprio 0")
    e(s32(AO + 16, AV + 8, sp))
    e(s16(AL + 4, AONE, sp))
    e(s32(AO + 16, AV + 12, sp + 8))
    e(s16(AL + 4, AONE, sp + 8))
    e(f"s_lshl_b32 s{S_T0}, s{S_WAVE}, 12")
    e(f"s_add_u32 s{S_T0}, s{S_T0}, {128*K1}")
    e(f"v_add_u32 v4, s{S_T0}, v{VL16}")
    e(f"s_lshl_b32 s{S_T1}, s{S_WAVE}, 8")
    e(f"s_add_u32 s{S_T1}, s{S_T1}, {LDS_RING}")
    e(f"v_lshl_add_u32 v5, v0, 2, s{S_T1}")
    e("s_waitcnt vmcnt(0) lgkmcnt(0)")
    e("s_barrier")
    stamp(e, 4)
    e("s_nop 4")
    for j in range(4):
        e(f"ds_write_b128 v4, {vr(AO+16+4*j,4)} offset:{1024*j}")
    e(f"ds_write_b32 v5, v{AL+4}")
    e("v_xor_b32 v4, 0x4000, v4")
    e("v_xor_b32 v5, 0x400, v5")
    e("s_waitcnt lgkmcnt(0)")
    e("s_barrier")
    for j in range(4):
        e(f"ds_read_b128 {vr(AS+4*j,4)}, v4 offset:{1024*j}")
    e(f"ds_read_b32 v{AL+1}, v5")
    tf_soff(e, S_T0, L_O, 32, 2)
    e(f"s_lshr_b32 s{S_T1}, s{S_WAVE}, 2")
    e(f"s_lshl_b32 s{S_T1}, s{S_T1}, 13")
    e(f"s_add_u32 s{S_AOFF}, s{S_T0}, s{S_T1}")
    e(f"v_and_b32 v{AOA}, 15, v0")
    e(f"v_lshlrev_b32 v{AOA}, 4, v{AOA}")
    e("v_bfe_u32 v6, v0, 4, 1")
    e(f"v_lshl_add_u32 v{AOA}, v6, 10, v{AOA}")
    e("v_lshrrev_b32 v6, 5, v0")
    e(f"v_lshl_add_u32 v{AOA}, v6, 9, v{AOA}")
    e("s_waitcnt lgkmcnt(0)")
    e("s_barrier")
    e(f"v_add_f32 v{AL}, v{AL}, v{AL+1}")
    for i in range(0, 16, 2):
        e(f"v_pk_add_f32 {vr(AO+i,2)}, {vr(AO+i,2)}, {vr(AS+i,2)}")
    e(f"v_pk_mul_f32 v[10:11], {vr(AO,2)}, 0 op_sel_hi:[1,0]")
    for i in range(2, 16, 2):
        e(f"v_pk_fma_f32 v[10:11], {vr(AO+i,2)}, 0, v[10:11] op_sel_hi:[1,0,1]")
    e("v_add_f32 v10, v10, v11")
    e(f"v_add_f32 v10, v10, v{AL}")
    lo, hi = CFG.get("lrange", (2.0 ** -32, 2.0 ** 64))
    e(f"s_mov_b32 s{S_T1}, {hexf(lo)}")
    e(f"v_cmp_nle_f32 {sr(S_MSK,2)}, s{S_T1}, v10")
    e(f"v_cmp_nge_f32 vcc, {hexf(hi)}, v10")
    e(f"s_or_b64 vcc, vcc, {sr(S_MSK,2)}")
    slow, back = e.label("slow"), e.label("back")
    e(f"s_cbranch_scc1 {slow}")
    e(f"{back}:")
    e(f"v_rcp_f32 v{AL}, v{AL}")
    e("s_nop 0")
    for i in range(0, 16, 2):
        e(f"v_pk_mul_f32 {vr(AO+i,2)}, {vr(AO+i,2)}, {vr(AL,2)} op_sel_hi:[1,0]")
    for r in range(8):
        e(f"v_cvt_pk_bf16_f32 v{AK+r}, v{AO+2*r}, v{AO+2*r+1}")
    for m in range(2):
        e(f"buffer_store_dwordx4 {vr(AK+4*m,4)}, v{AOA}, {WSD}, s{S_AOFF} offen offset:{256*m} sc1")
    signal(e, C_O, S_RT)

    def slow_path():
        e(f"{slow}:")
        l1, l2 = e.label("sl1"), e.label("sl2")
        kvd = sr(SRD_KV, 4)
        e("v_mov_b32 v10, 0xff800000")
        e(f"s_mov_b32 s{S_T1}, 0")
        e(f"{l1}:")
        for m in range(2):
            e(f"buffer_load_dwordx4 {vr(AK+4*m,4)}, v{VL16}, {kvd}, s{S_T1} offen offset:{1024*m} sc1")
        e("s_waitcnt vmcnt(0)")
        e(m32(AS, AK, AQ, "0"))
        e(m32(AS, AK + 4, AQ + 4))
        e("s_nop 11")
        for i in range(0, 16, 2):
            e(f"v_max3_f32 v10, v{AS+i}, v{AS+i+1}, v10")
        e(f"s_add_u32 s{S_T1}, s{S_T1}, 4096")
        e(f"s_cmp_lt_u32 s{S_T1}, 0x40000")
        e(f"s_cbranch_scc1 {l1}")
        e("v_mov_b32 v11, v10")
        e("s_nop 1")
        e("v_permlane32_swap_b32 v10, v11")
        e("v_max_f32 v10, v10, v11")
        for i in range(16):
            e(f"v_sub_f32 v{AS+16+i}, 0, v10")
            e(f"v_mov_b32 v{AO+i}, 0")
        for i in range(4):
            e(f"v_mov_b32 v{AL+i}, 0")
        e(f"s_mov_b32 s{S_T1}, 0")
        e(f"{l2}:")
        for m in range(2):
            e(f"buffer_load_dwordx4 {vr(AK+4*m,4)}, v{VL16}, {kvd}, s{S_T1} offen offset:{1024*m} sc1")
            e(f"buffer_load_dwordx4 {vr(AV+4*m,4)}, v{VL16}, {kvd}, s{S_T1} offen offset:{2048+1024*m} sc1")
        e("s_waitcnt vmcnt(0)")
        e(m32(AS, AK, AQ, vr(AS + 16, 16)))
        e(m32(AS, AK + 4, AQ + 4))
        e("s_nop 11")
        for i in range(16):
            e(f"v_exp_f32 v{AS+i}, v{AS+i}")
        e("s_nop 1")
        e(s32(AO, AV, AS))
        e(s16(AL, AONE, AS))
        e(s32(AO, AV + 4, AS + 8))
        e(s16(AL, AONE, AS + 8))
        e(f"s_add_u32 s{S_T1}, s{S_T1}, 4096")
        e(f"s_cmp_lt_u32 s{S_T1}, 0x40000")
        e(f"s_cbranch_scc1 {l2}")
        e("s_nop 11")
        e(f"s_branch {back}")

    return slow_path


def main_kernel(e):
    done = e.label("done")
    e(f"s_load_dwordx2 s[6:7], s[0:1], {ARG['ws']}")
    e(f"s_load_dwordx4 s[8:11], s[0:1], {ARG['b2']}")
    e("s_cmp_ge_u32 s2, 256")
    e(f"s_cbranch_scc1 {done}")
    e("v_lshrrev_b32 v4, 6, v0")
    e("v_and_b32 v0, 63, v0")
    e(f"v_readfirstlane_b32 s{S_WAVE}, v4")
    e(f"v_lshlrev_b32 v{VL16}, 4, v0")
    e(f"v_mov_b32 v{VZ}, 0")
    e(f"v_mov_b32 v{VST}, 0")
    e(f"s_and_b32 s{S_T0}, s2, 7")
    e(f"s_lshr_b32 s{S_T1}, s2, 3")
    e(f"s_lshr_b32 s{S_RB}, s{S_T0}, 1")
    e(f"s_lshl_b32 s{S_RB}, s{S_RB}, 2")
    e(f"s_and_b32 s{S_T2}, s{S_T1}, 3")
    e(f"s_add_u32 s{S_RB}, s{S_RB}, s{S_T2}")
    e(f"s_lshr_b32 s{S_CT}, s{S_T1}, 2")
    e(f"s_lshl_b32 s{S_CT}, s{S_CT}, 1")
    e(f"s_and_b32 s{S_T2}, s{S_T0}, 1")
    e(f"s_add_u32 s{S_CT}, s{S_CT}, s{S_T2}")
    e(f"s_and_b32 s{S_W4}, s{S_WAVE}, 3")
    e(f"s_lshl_b32 s{S_RT}, s{S_RB}, 2")
    e(f"s_add_u32 s{S_RT}, s{S_RT}, s{S_W4}")
    e(f"s_mov_b32 s{S_SEL}, 0x07060302")
    e(f"s_mov_b32 s{S_MASK}, 0xffff0000")
    e(f"s_mov_b32 s{S_L}, {hex(LBASE)}")
    e(f"s_mov_b32 s{S_LAYER}, 0")
    e("s_waitcnt lgkmcnt(0)")
    make_srd(e, SRD_WS, 6, WS_SIZE)
    make_srd(e, SRD_B, 8, 2048)
    make_srd(e, SRD_OUT, 10, 1 << 22)
    e(f"s_add_u32 s6, s6, {hex(LBASE + L_KV)}")
    e("s_addc_u32 s7, s7, 0")
    make_srd(e, SRD_KV, 6, 262144)
    stamp(e, 0)
    c_top, l_top, l_init, att, l_post = (e.label(x) for x in ("ctop", "ltop", "linit", "attn", "lpost"))
    e(f"s_cmp_ge_u32 s{S_WAVE}, 4")
    e(f"s_cbranch_scc1 {l_init}")

    tf_soff(e, S_T0, L_X, 32, 2)
    e(f"s_add_u32 s{S_T1}, s{S_T0}, 8192")
    for up in range(2):
        for a in range(2):
            e(f"buffer_load_dwordx4 {vr(16+8*up+4*a,4)}, v{VL16}, {WSD}, s{S_T0+up} offen offset:{1024*a}")
    e("s_waitcnt vmcnt(0)")
    for up in range(2):
        for a in range(2):
            for u in range(2):
                for r in range(2):
                    s, d = 16 + 8 * up + 4 * a + 2 * u + r, RES + 16 * up + 8 * u + 4 * a + 2 * r
                    e(f"v_lshlrev_b32 v{d}, 16, v{s}")
                    e(f"v_and_b32 v{d+1}, s{S_MASK}, v{s}")

    e(f"{c_top}:")
    QACC, AUGW, ST, XA = 176, 144, 160, 208
    e(f"s_lshl_b32 s{S_T0}, s{S_CT}, 12")
    e(f"s_add_u32 s{S_T0}, s{S_T0}, {hex(WS_AUGQ)}")
    for u in range(4):
        e(f"buffer_load_dwordx4 {vr(AUGW+4*u,4)}, v{VL16}, {WSD}, s{S_T0} offen offset:{1024*u}")
    for i in range(32):
        e(f"v_mov_b32 v{QACC+i}, 0")
    tf_soff(e, S_AOFF, L_X, 32, 0)
    skip = e.label("nox")
    e("s_barrier")
    e(f"s_cmp_eq_u32 s{S_LAYER}, 0")
    e(f"s_cbranch_scc1 {skip}")
    poll(e, 16, True)
    e(f"{skip}:")
    stamp(e, 1)
    fill = Rec()
    fill("s_waitcnt vmcnt(0)")
    ln_scalars(fill, ST, False)
    xaug(fill, ST, XA, False)
    fill(f"v_mul_f32 v{ST+4}, {hexf(LOG2E * 32 ** -0.5)}, v{ST+3}")
    spread(fill, [(ST + 4, ST + 5)])
    resident_gemm(e, QACC, None, lambda: stats_loads(e, ST, L_STA, S_RT, 4), 16, fill)
    e("s_nop 1")
    for u in range(4):
        for a in range(2):
            e(m16(QACC + 8 * u + 4 * a, AUGW + 4 * u, XA + 4 * a))
    stamp(e, 2)
    e(f"s_lshl_b32 s{S_T0}, s{S_W4}, 12")
    e(f"s_add_u32 s{S_T0}, s{S_T0}, {LDS_QX}")
    e(f"v_add_u32 v4, s{S_T0}, v{VL16}")
    e("s_nop 4")
    for u in range(4):
        for a in range(2):
            for r in range(2):
                x = QACC + 8 * u + 4 * a + 2 * r
                e(f"v_pk_mul_f32 {vr(x,2)}, {vr(x,2)}, {vr(ST+4,2)} op_sel:[0,{a}] op_sel_hi:[1,{a}]")
    for hd in range(2):
        pack_pair(e, QACC + 16 * hd, AQ + 8 * hd)
    e("s_nop 1")
    for hd in range(2):
        for r in range(4):
            e(f"v_permlane16_swap_b32 v{AQ+8*hd+r}, v{AQ+8*hd+4+r}")
    for f in range(4):
        e(f"ds_write_b128 v4, {vr(AQ+4*f,4)} offset:{1024*f}")
    e("s_waitcnt lgkmcnt(0)")
    e("s_barrier")
    e(f"s_branch {att}")

    e(f"{l_init}:")
    e(f"s_and_b32 s{S_T0}, s{S_CT}, 1")
    e(f"s_lshl_b32 s{S_T0}, s{S_T0}, 2")
    e(f"s_add_u32 s{S_T0}, s{S_T0}, s{S_W4}")
    e(f"s_lshl_b32 s{S_T0}, s{S_T0}, 14")
    e(f"s_add_u32 s{S_T0}, s{S_T0}, {hex(WS_WKV)}")
    for f in range(16):
        e(f"buffer_load_dwordx4 {vr(WKV+4*f,4)}, v{VL16}, {WSD}, s{S_T0} offen offset:{1024*(f % 4)}")
        if f % 4 == 3:
            e(f"s_add_u32 s{S_T0}, s{S_T0}, 4096")
    e(f"{l_top}:")
    e(f"s_lshl_b32 s{S_M0}, s{S_W4}, 14")
    e(f"s_lshl_b32 s{S_WOFF}, s{S_CT}, 17")
    e(f"s_add_u32 s{S_WOFF}, s{S_WOFF}, s{S_M0}")
    dma_run(e, 16, 0, CFG.get("thr_pre"))
    e(f"s_add_u32 s{S_WOFF}, s{S_WOFF}, 0x10000")
    dma_run(e, 16, 64 * K1, CFG.get("thr_pre"))
    e(f"v_mov_b32 v5, {LDS_KVX + 10*K1}")
    e(f"ds_write_b32 v5, v{VZ}")
    e("s_waitcnt vmcnt(0) lgkmcnt(0)")
    e("s_barrier")
    stamp(e, 1)
    e("s_setprio 2")
    kv_piece(e)
    e("s_setprio 0")
    stamp(e, 2)
    nokv = e.label("nokv")
    e(f"s_cmp_lg_u32 s{S_W4}, 0")
    e(f"s_cbranch_scc1 {nokv}")
    cnt_off(e, S_T5, C_KV2, S_RB)
    poll(e, 16, False)
    for i in range(16):
        if i % 4 == 0:
            e(f"s_mov_b32 m0, {LDS_KVX + i*1024}")
            e(f"s_mov_b32 s{S_T0}, {i*1024}")
        e(f"buffer_load_dwordx4 v{VL16}, {sr(SRD_KV,4)}, s{S_T0} offen offset:{(i % 4)*1024} sc1 lds")
    e("s_waitcnt vmcnt(0)")
    e(f"{nokv}:")
    e(f"s_lshl_b32 s{S_T0}, s{S_W4}, 12")
    e(f"s_add_u32 s{S_T0}, s{S_T0}, {LDS_QX}")
    e(f"v_add_u32 v4, s{S_T0}, v{VL16}")
    e("s_barrier")
    for f in range(4):
        e(f"ds_read_b128 {vr(AQ+4*(f ^ 2),4)}, v4 offset:{1024*f}")

    e(f"{att}:")
    stamp(e, 3)
    slow_path = attention(e)
    stamp(e, 5)
    e(f"s_cmp_ge_u32 s{S_WAVE}, 4")
    e(f"s_cbranch_scc1 {l_post}")

    tf_soff(e, S_AOFF, L_O, 32, 0)
    poll(e, 32, True)
    stamp(e, 6)
    resident_gemm(e, RES, 96)
    e("s_barrier")
    stamp(e, 7)
    tf_soff(e, S_T0, L_X1, 32, 2)
    e(f"s_add_u32 s{S_T1}, s{S_T0}, 8192")
    for up in range(2):
        pack_pair(e, RES + 16 * up, 16 + 8 * up)
        for a in range(2):
            e(f"buffer_store_dwordx4 {vr(16+8*up+4*a,4)}, v{VL16}, {WSD}, s{S_T0+up} offen offset:{1024*a} sc1")
    stats_out(e, RES, 32, L_STB)
    signal(e, C_X1, S_RT)

    ACC, AR, WR, ST, XA = 16, 128, 160, 188, 204
    for i in range(112):
        e(f"v_mov_b32 v{ACC+i}, 0")
    tf_soff(e, S_AOFF, L_X1, 32, 0)
    poll(e, 16, True)
    stamp(e, 8)
    c0 = -2.0 * math.sqrt(2.0 / math.pi) * LOG2E
    c1 = c0 * 0.044715
    GK0, GK1, GIN = 212, 214, 216
    fill = Rec()
    fill("s_waitcnt vmcnt(0)")
    ln_scalars(fill, ST, True)
    xaug(fill, ST, XA, True)
    fill(f"v_mul_f32 v{GK0}, {hexf(c0)}, v{ST+3}")
    fill(f"v_mul_f32 v{GK1}, v{ST+3}, v{ST+3}")
    fill(f"v_mul_f32 v{GK1}, v{GK1}, v{ST+3}")
    fill(f"v_mul_f32 v{GK1}, {hexf(c1)}, v{GK1}")
    fill(f"v_mov_b32 v{GIN}, v{ST+6}")
    spread(fill, [(GK0, GK0 + 1), (GK1, GK1 + 1), (GIN, GIN + 1)])
    d = DLoop(ACC, 14, AR, 4, WR, 7, CFG.get("la_w1", 4))
    ring_gemm(e, d, 2, 16, 5, 6, True, lambda: stats_loads(e, ST, L_STB, S_RT, 4), 16, fill, XA)
    e("s_barrier")
    stamp(e, 9)
    tf_soff(e, S_T0, L_H, 112, 7)
    T = AR
    for j in range(7):
        a0 = ACC + 16 * j
        sel = lambda i: (i // 4) % 2
        for i in range(0, 16, 2):
            e(f"v_pk_mul_f32 {vr(T+i,2)}, {vr(a0+i,2)}, {vr(a0+i,2)}")
        for i in range(0, 16, 2):
            a = sel(i)
            e(f"v_pk_fma_f32 {vr(T+i,2)}, {vr(T+i,2)}, {vr(GK1,2)}, {vr(GK0,2)} op_sel:[0,{a},{a}] op_sel_hi:[1,{a},{a}]")
        for i in range(0, 16, 2):
            e(f"v_pk_mul_f32 {vr(T+i,2)}, {vr(T+i,2)}, {vr(a0+i,2)}")
        for i in range(16):
            e(f"v_exp_f32 v{T+i}, v{T+i}")
        for i in range(0, 16, 2):
            a = sel(i)
            e(f"v_pk_fma_f32 {vr(T+i,2)}, {vr(T+i,2)}, {vr(GIN,2)}, {vr(GIN,2)} op_sel:[0,{a},{a}] op_sel_hi:[1,{a},{a}]")
        for i in range(16):
            e(f"v_rcp_f32 v{T+i}, v{T+i}")
        for i in range(0, 16, 2):
            e(f"v_pk_mul_f32 {vr(a0+i,2)}, {vr(T+i,2)}, {vr(a0+i,2)}")
        P = WR + 8 * (j % 2)
        pack_pair(e, a0, P)
        for a in range(2):
            e(f"buffer_store_dwordx4 {vr(P+4*a,4)}, v{VL16}, {WSD}, s{S_T0} offen offset:{1024*a} sc1")
        e(f"s_add_u32 s{S_T0}, s{S_T0}, 8192")
    stamp(e, 10)
    signal(e, C_H, S_RT)

    BF = 128
    e(f"s_lshl_b32 s{S_T0}, s{S_CT}, 7")
    e("v_and_b32 v4, 15, v0")
    e("v_lshlrev_b32 v4, 1, v4")
    for u in range(4):
        e(f"buffer_load_ushort v{BF+4*u}, v4, {sr(SRD_B,4)}, s{S_T0} offen offset:{32*u}")
        for i in range(1, 4):
            e(f"v_mov_b32 v{BF+4*u+i}, 0")
    e("v_cmp_gt_u32 vcc, 16, v0")
    e("v_mov_b32 v6, 0x3f80")
    for i in range(1, 4):
        e(f"v_mov_b32 v{BF+16+i}, 0")
    e(f"v_cndmask_b32 v{BF+16}, 0, v6, vcc")
    tf_soff(e, S_AOFF, L_H, 112, 0)
    poll(e, 16, True)
    stamp(e, 11)
    for u in range(4):
        for a in range(2):
            e(m16(RES + 8 * u + 4 * a, BF + 4 * u, BF + 16))
    d = DLoop(RES, 4, 16, 7, 72, 7, CFG.get("la_w2", 4))
    ring_gemm(e, d, 7, 16, 5, 6, False)
    e("s_barrier")
    stamp(e, 12)
    last = e.label("last")
    e(f"s_cmp_lg_u32 s{S_LAYER}, 0")
    e(f"s_cbranch_scc1 {last}")
    tf_soff(e, S_T0, L_X, 32, 2, True)
    e(f"s_add_u32 s{S_T1}, s{S_T0}, 8192")
    for up in range(2):
        pack_pair(e, RES + 16 * up, 16 + 8 * up)
        for a in range(2):
            e(f"buffer_store_dwordx4 {vr(16+8*up+4*a,4)}, v{VL16}, {WSD}, s{S_T0+up} offen offset:{1024*a} sc1")
    stats_out(e, RES, 32, L_STA, True)
    signal(e, C_X, S_RT, True)

    def next_layer():
        e(f"s_mov_b32 s{S_LAYER}, 1")
        e(f"s_add_u32 s{S_L}, s{S_L}, {hex(LSTRIDE)}")
        e(f"s_add_u32 s{SRD_KV}, s{SRD_KV}, {hex(LSTRIDE)}")
        e(f"s_addc_u32 s{SRD_KV+1}, s{SRD_KV+1}, 0")

    stamp(e, 13)
    next_layer()
    e(f"s_branch {c_top}")
    e(f"{last}:")
    rm_voff(e, 4, 5)
    e("v_add_u32 v5, 0x8000, v4")
    for up in range(2):
        pack_pair(e, RES + 16 * up, 16 + 8 * up)
    e("s_nop 1")
    for up in range(2):
        for a in range(2):
            b = 16 + 8 * up + 4 * a
            for r in range(2):
                e(f"v_permlane16_swap_b32 v{b+r}, v{b+2+r}")
            e(f"buffer_store_dwordx4 {vr(b,4)}, v{4+a}, {sr(SRD_OUT,4)}, 0 offen offset:{64*up}")
    if CFG.get("stamps"):
        e("s_waitcnt vmcnt(0)")
    stamp(e, 13)
    stamp_flush(e)
    e("s_endpgm")

    e(f"{l_post}:")
    e(f"s_lshl_b32 s{S_M0}, s{S_W4}, 13")
    e(f"s_lshl_b32 s{S_WOFF}, s{S_CT}, 17")
    e(f"s_add_u32 s{S_WOFF}, s{S_WOFF}, s{S_M0}")
    e(f"s_add_u32 s{S_WOFF}, s{S_WOFF}, {hex(WS_WO + 96*K1)}")
    dma_run(e, 8, 96 * K1, CFG.get("thr_pre"))
    e("s_waitcnt vmcnt(0)")
    e("s_barrier")
    e("s_barrier")
    ring_loader(e, WS_W1, 33 * 14 * K1, 16, 5, True)
    e("s_barrier")
    ring_loader(e, WS_W2, 112 * 4 * K1, 16, 5, False)
    e("s_barrier")
    lend = e.label("lend")
    e(f"s_cmp_lg_u32 s{S_LAYER}, 0")
    e(f"s_cbranch_scc1 {lend}")
    next_layer()
    e(f"s_branch {l_top}")
    e(f"{lend}:")
    stamp_flush(e)
    e(f"{done}:")
    e("s_endpgm")
    slow_path()


def prep_kernel(e):
    done, jobs = e.label("done"), e.label("jobs")
    e(f"s_load_dwordx4 s[4:7], s[0:1], {ARG['x']}")
    e(f"s_load_dwordx4 s[8:11], s[0:1], {ARG['wk']}")
    e(f"s_load_dwordx2 s[12:13], s[0:1], {ARG['wo']}")
    e(f"s_load_dwordx4 s[16:19], s[0:1], {ARG['w1']}")
    e(f"s_load_dwordx2 s[14:15], s[0:1], {ARG['w2']}")
    e(f"s_load_dwordx2 s[70:71], s[0:1], {ARG['ws']}")
    e("s_cmp_ge_u32 s2, 290")
    e(f"s_cbranch_scc1 {done}")
    e("v_lshrrev_b32 v4, 6, v0")
    e("v_and_b32 v0, 63, v0")
    e(f"v_readfirstlane_b32 s{S_WAVE}, v4")
    e(f"v_lshlrev_b32 v{VL16}, 4, v0")
    e(f"s_mov_b32 s{S_SEL}, 0x07060302")
    e(f"s_mov_b32 s{S_MASK}, 0xffff0000")
    e(f"s_mov_b32 s{S_L}, {hex(LBASE)}")
    e(f"s_and_b32 s{S_W4}, s{S_WAVE}, 3")
    e("s_waitcnt lgkmcnt(0)")
    make_srd(e, SRD_WS, 70, WS_SIZE)
    make_srd(e, SRD_B, 18, 7168)
    S_J, S_ROW, S_SRC, S_DST, S_KBS, S_AUG, S_BIAS, S_Q, S_LR, S_CB, S_PO = 72, 73, 74, 75, 76, 77, 78, 79, 80, 81, 82
    e(f"s_lshr_b32 s{S_T0}, s{S_WAVE}, 2")
    e(f"s_lshl_b32 s{S_J}, s2, 1")
    e(f"s_add_u32 s{S_J}, s{S_J}, s{S_T0}")
    e(f"s_lshl_b32 s{S_SLOT}, s{S_T0}, 15")
    e(f"s_mov_b32 s{S_LR}, 128")
    e(f"s_lshl_b32 s{S_CB}, s{S_W4}, 5")
    e(f"s_mov_b32 s{S_PO}, 0")
    e(f"s_mov_b32 s{S_AUG}, 0")
    e(f"s_mov_b32 s{S_BIAS}, 0x10000")
    e(f"s_mov_b32 s{S_KBS}, 4096")
    e(f"s_mov_b32 s{S_ROW}, 2048")
    lq, lkv, lo, l2, go = (e.label(x) for x in ("jq", "jkv", "jo", "j2", "go"))
    for lim, lab in ((356, l2), (292, lo), (288, lkv), (224, lq)):
        e(f"s_cmp_ge_u32 s{S_J}, {lim}")
        e(f"s_cbranch_scc1 {lab}")

    def src_off(cg, row):
        e(f"s_lshl_b32 s{S_T2}, s{S_Q}, 2")
        e(f"s_add_u32 s{S_T2}, s{S_T2}, s{S_W4}")
        e(f"s_mul_i32 s{S_SRC}, s{S_T2}, {64*row}")
        e(f"s_lshl_b32 s{S_T2}, s{cg}, 7")
        e(f"s_add_u32 s{S_SRC}, s{S_SRC}, s{S_T2}")

    def panel64(base, kbtot):
        e(f"s_mul_i32 s{S_DST}, s{S_T1}, {kbtot}")
        e(f"s_lshl_b32 s{S_T2}, s{S_Q}, 3")
        e(f"s_add_u32 s{S_DST}, s{S_DST}, s{S_T2}")
        e(f"s_lshl_b32 s{S_DST}, s{S_DST}, 2")
        e(f"s_add_u32 s{S_DST}, s{S_DST}, s{S_W4}")
        e(f"s_lshl_b32 s{S_DST}, s{S_DST}, 10")
        e(f"s_add_u32 s{S_DST}, s{S_DST}, {hex(base)}")

    make_srd(e, SRD_P, 16, 7340032)
    e(f"s_mov_b32 s{S_ROW}, 7168")
    e(f"s_lshr_b32 s{S_T1}, s{S_J}, 2")
    e(f"s_and_b32 s{S_Q}, s{S_J}, 3")
    src_off(S_T1, 7168)
    e(f"s_lshl_b32 s{S_T1}, s{S_T1}, 2")
    e(f"s_add_u32 s{S_T1}, s{S_T1}, s{S_W4}")
    e(f"s_lshl_b32 s{S_BIAS}, s{S_T1}, 5")
    e(f"s_mul_hi_u32 s{S_T2}, s{S_T1}, {(1 << 32)//14 + 1}")
    e(f"s_mul_i32 s{S_T3}, s{S_T2}, 14")
    e(f"s_sub_u32 s{S_T3}, s{S_T1}, s{S_T3}")
    e(f"s_mul_i32 s{S_T2}, s{S_T2}, {33*14}")
    e(f"s_add_u32 s{S_T2}, s{S_T2}, s{S_T3}")
    e(f"s_lshl_b32 s{S_T2}, s{S_T2}, 10")
    e(f"s_add_u32 s{S_T2}, s{S_T2}, {hex(WS_W1)}")
    e(f"s_add_u32 s{S_AUG}, s{S_T2}, {32*14*K1}")
    e(f"s_mul_i32 s{S_DST}, s{S_Q}, {8*14*K1}")
    e(f"s_add_u32 s{S_DST}, s{S_DST}, s{S_T2}")
    e(f"s_mov_b32 s{S_KBS}, {14*K1}")
    e(f"s_branch {go}")
    e(f"{lq}:")
    make_srd(e, SRD_P, 6, 1 << 21)
    e(f"s_sub_u32 s{S_T1}, s{S_J}, 224")
    e(f"s_and_b32 s{S_Q}, s{S_T1}, 3")
    e(f"s_lshr_b32 s{S_T1}, s{S_T1}, 2")
    src_off(S_T1, 2048)
    panel64(WS_WQ, 32)
    e(f"s_lshl_b32 s{S_AUG}, s{S_T1}, 2")
    e(f"s_add_u32 s{S_AUG}, s{S_AUG}, s{S_W4}")
    e(f"s_lshl_b32 s{S_AUG}, s{S_AUG}, 10")
    e(f"s_add_u32 s{S_AUG}, s{S_AUG}, {hex(WS_AUGQ)}")
    e(f"s_branch {go}")
    e(f"{lkv}:")
    e(f"s_bitcmp1_b32 s{S_W4}, 1")
    e("s_cselect_b32 s8, s10, s8")
    e("s_cselect_b32 s9, s11, s9")
    make_srd(e, SRD_P, 8, 65536)
    e(f"s_sub_u32 s{S_Q}, s{S_J}, 288")
    e(f"s_mov_b32 s{S_ROW}, 128")
    e(f"s_mov_b32 s{S_LR}, 64")
    e(f"s_and_b32 s{S_T1}, s{S_W4}, 1")
    e(f"s_lshr_b32 s{S_T2}, s{S_W4}, 1")
    e(f"s_lshl_b32 s{S_SRC}, s{S_Q}, 1")
    e(f"s_add_u32 s{S_SRC}, s{S_SRC}, s{S_T1}")
    e(f"s_lshl_b32 s{S_SRC}, s{S_SRC}, 13")
    e(f"s_lshl_b32 s{S_CB}, s{S_T2}, 14")
    e(f"s_lshl_b32 s{S_T3}, s{S_T1}, 5")
    e(f"s_add_u32 s{S_CB}, s{S_CB}, s{S_T3}")
    e(f"s_lshl_b32 s{S_DST}, s{S_T2}, 2")
    e(f"s_add_u32 s{S_DST}, s{S_DST}, s{S_Q}")
    e(f"s_lshl_b32 s{S_DST}, s{S_DST}, 4")
    e(f"s_add_u32 s{S_DST}, s{S_DST}, s{S_T1}")
    e(f"s_lshl_b32 s{S_DST}, s{S_DST}, 10")
    e(f"s_add_u32 s{S_DST}, s{S_DST}, {hex(WS_WKV)}")
    e(f"s_mov_b32 s{S_KBS}, 2048")
    e(f"s_lshl_b32 s{S_AUG}, s{S_W4}, 10")
    e(f"s_add_u32 s{S_AUG}, s{S_AUG}, {hex(WS_AUGKV)}")
    e(f"s_branch {go}")
    e(f"{lo}:")
    make_srd(e, SRD_P, 12, 1 << 21)
    e(f"s_sub_u32 s{S_T1}, s{S_J}, 292")
    e(f"s_and_b32 s{S_Q}, s{S_T1}, 3")
    e(f"s_lshr_b32 s{S_T1}, s{S_T1}, 2")
    src_off(S_T1, 2048)
    panel64(WS_WO, 32)
    e(f"s_mov_b32 s{S_PO}, 1")
    e(f"s_branch {go}")
    e(f"{l2}:")
    make_srd(e, SRD_P, 14, 7340032)
    e(f"s_sub_u32 s{S_T3}, s{S_J}, 356")
    e(f"s_and_b32 s{S_T1}, s{S_T3}, 15")
    e(f"s_lshr_b32 s{S_Q}, s{S_T3}, 4")
    src_off(S_T1, 2048)
    panel64(WS_W2, 112)
    e(f"{go}:")
    e("v_lshrrev_b32 v4, 3, v0")
    e(f"v_mul_lo_u32 v4, v4, s{S_ROW}")
    e("v_and_b32 v5, 7, v0")
    e("v_lshl_add_u32 v4, v5, 4, v4")
    e(f"s_lshl_b32 s{S_T0}, s{S_W4}, 13")
    e(f"s_add_u32 s{S_T0}, s{S_T0}, s{S_SLOT}")
    e(f"s_lshl_b32 s{S_T1}, s{S_ROW}, 3")
    for i in range(8):
        e(f"s_add_u32 m0, s{S_T0}, {1024*i}")
        e("s_nop 0")
        e(f"buffer_load_dwordx4 v4, {sr(SRD_P,4)}, s{S_SRC} offen lds")
        e(f"s_add_u32 s{S_SRC}, s{S_SRC}, s{S_T1}")
    e("v_and_b32 v6, 15, v0")
    e("v_lshlrev_b32 v6, 1, v6")
    e(f"v_add_u32 v6, s{S_BIAS}, v6")
    e(f"buffer_load_ushort v15, v6, {sr(SRD_B,4)}, 0 offen")
    nox, noz = e.label("nox"), e.label("noz")
    e("s_cmp_ge_u32 s2, 256")
    e(f"s_cbranch_scc1 {nox}")
    e(f"s_cmp_lg_u32 s{S_WAVE}, 7")
    e(f"s_cbranch_scc1 {noz}")
    e("s_cmp_ge_u32 s2, 36")
    e(f"s_cbranch_scc1 {noz}")
    e("v_mov_b32 v8, 0")
    e(f"s_lshr_b32 s{S_T0}, s2, 1")
    e(f"s_mul_i32 s{S_T0}, s{S_T0}, {16*CSTR}")
    e(f"s_and_b32 s{S_T1}, s2, 1")
    e(f"s_mul_i32 s{S_T1}, s{S_T1}, {hex(LSTRIDE)}")
    e(f"s_add_u32 s{S_T0}, s{S_T0}, s{S_T1}")
    e(f"s_add_u32 s{S_T0}, s{S_T0}, {hex(LBASE + L_CNT)}")
    e("v_and_b32 v9, 15, v0")
    e(f"v_mul_u32_u24 v9, {CSTR}, v9")
    e(f"buffer_store_dword v8, v9, {WSD}, s{S_T0} offen")
    e(f"{noz}:")
    e(f"s_cmp_ge_u32 s{S_WAVE}, 4")
    e(f"s_cbranch_scc1 {nox}")
    make_srd(e, SRD_OUT, 4, 1 << 22)
    e(f"s_lshr_b32 s{S_RB}, s2, 4")
    e(f"s_and_b32 s{S_CT}, s2, 15")
    e(f"s_lshl_b32 s{S_RT}, s{S_RB}, 2")
    e(f"s_add_u32 s{S_RT}, s{S_RT}, s{S_W4}")
    rm_voff(e, 8, 9)
    e("v_add_u32 v9, 0x8000, v8")
    for up in range(2):
        for a in range(2):
            e(f"buffer_load_dwordx4 {vr(16+8*up+4*a,4)}, v{8+a}, {sr(SRD_OUT,4)}, 0 offen offset:{64*up}")
    tf_soff(e, S_T0, L_X, 32, 2)
    e(f"s_add_u32 s{S_T1}, s{S_T0}, 8192")
    e("s_waitcnt vmcnt(0)")
    for up in range(2):
        for a in range(2):
            b = 16 + 8 * up + 4 * a
            for r in range(2):
                e(f"v_permlane16_swap_b32 v{b+r}, v{b+2+r}")
            e(f"buffer_store_dwordx4 {vr(b,4)}, v{VL16}, {WSD}, s{S_T0+up} offen offset:{1024*a}")
            for u in range(2):
                for r in range(2):
                    s, d = b + 2 * u + r, 48 + 16 * up + 8 * u + 4 * a + 2 * r
                    e(f"v_lshlrev_b32 v{d}, 16, v{s}")
                    e(f"v_and_b32 v{d+1}, s{S_MASK}, v{s}")
    stats_out(e, 48, 32, L_STA, False, "")
    e(f"{nox}:")
    e("v_lshrrev_b32 v4, 4, v0")
    e("v_lshlrev_b32 v5, 2, v4")
    e("v_and_b32 v6, 1, v4")
    e("v_lshlrev_b32 v6, 4, v6")
    e("v_lshrrev_b32 v7, 1, v4")
    e("v_lshl_add_u32 v6, v7, 2, v6")
    e(f"s_cmp_eq_u32 s{S_PO}, 1")
    e(f"s_cselect_b64 {sr(S_MSK,2)}, -1, 0")
    e(f"s_cselect_b32 s{S_T2}, 8, 16")
    e(f"v_cndmask_b32 v5, v5, v6, {sr(S_MSK,2)}")
    e("v_bfe_u32 v6, v0, 2, 2")
    e("v_add_u32 v5, v5, v6")
    e(f"v_mul_lo_u32 v5, v5, s{S_LR}")
    e("v_and_b32 v6, 3, v0")
    e("v_lshl_add_u32 v5, v6, 3, v5")
    e(f"s_add_u32 s{S_T0}, s{S_CB}, s{S_SLOT}")
    e(f"v_add_u32 v5, s{S_T0}, v5")
    e(f"s_mul_i32 s{S_T2}, s{S_T2}, s{S_LR}")
    e(f"v_add_u32 v6, s{S_T2}, v5")
    e(f"s_lshl_b32 s{S_T3}, s{S_LR}, 5")
    for i in range(4):
        e(f"v_mov_b32 v{8+i}, 0x3f803f80")
    e("s_waitcnt vmcnt(0)")
    e("s_barrier")
    for i in range(8):
        e(f"ds_read_b64_tr_b16 {vr(16+4*i,2)}, v5")
        e(f"ds_read_b64_tr_b16 {vr(18+4*i,2)}, v6")
        e(f"v_add_u32 v5, s{S_T3}, v5")
        e(f"v_add_u32 v6, s{S_T3}, v6")
        if i == 3:
            e("s_waitcnt lgkmcnt(0)")
    e("s_waitcnt lgkmcnt(0)")
    for i in range(8):
        e(f"buffer_store_dwordx4 {vr(16+4*i,4)}, v{VL16}, {WSD}, s{S_DST} offen")
        e(f"s_add_u32 s{S_DST}, s{S_DST}, s{S_KBS}")
        e(m16(48, 8, 16 + 4 * i, "0" if i == 0 else None))
    e(f"s_cmp_eq_u32 s{S_AUG}, 0")
    e(f"s_cbranch_scc1 {done}")
    e("s_nop 7")
    split3(e, 48, 49, 50, 51)
    pack_hi(e, 52, 48, 48)
    pack_hi(e, 53, 49, 49)
    pack_hi(e, 54, 48, 50)
    e("v_lshl_or_b32 v55, v15, 16, v15")
    e("v_lshrrev_b32 v4, 4, v0")
    e(f"v_cmp_eq_u32 vcc, s{S_Q}, v4")
    e("s_nop 1")
    e("s_mov_b64 exec, vcc")
    e(f"buffer_store_dwordx4 v[52:55], v{VL16}, {WSD}, s{S_AUG} offen")
    e(f"{done}:")
    e("s_endpgm")


def descriptor(name, vgpr):
    acc = (vgpr + 3) // 4 * 4
    return f""".amdhsa_kernel {name}
  .amdhsa_next_free_vgpr {vgpr}
  .amdhsa_next_free_sgpr 96
  .amdhsa_accum_offset {acc}
  .amdhsa_group_segment_fixed_size 0
  .amdhsa_kernarg_size 104
  .amdhsa_user_sgpr_count 2
  .amdhsa_user_sgpr_kernarg_segment_ptr 1
  .amdhsa_system_sgpr_workgroup_id_x 1
.end_amdhsa_kernel"""


def build(cfg=None):
    CFG.clear()
    CFG.update(cfg or {})
    e = Asm()
    kernels = []

    def start(name, vgpr):
        e(f".globl {name}")
        e(".p2align 8")
        e(f".type {name},@function")
        e(f"{name}:")
        kernels.append((name, vgpr))

    e('.amdgcn_target "amdgcn-amd-amdhsa--gfx950"')
    e(".text")
    start("prep_kernel", 96)
    prep_kernel(e)
    start("main_kernel", 256)
    main_kernel(e)
    e('.section .rodata,"a"')
    for name, vgpr in kernels:
        e(".p2align 6")
        e.l.append(descriptor(name, vgpr))
    launches = [("prep_kernel", 290, 65536), ("main_kernel", 256, 163840)]
    head = ["; MQA attention + channel MLP, two interleaved layers (generated by a script)"]
    head += [f"; @launch kernel={n} grid=({gx},1,1) block=(512,1,1) lds={l}" for n, gx, l in launches]
    return "\n".join(head) + "\n" + e.text() + "\n"


if __name__ == "__main__":
    out = sys.argv[1] if len(sys.argv) > 1 else f"cdna_kernels/{NAME}.s"
    cfg = eval(sys.argv[2]) if len(sys.argv) > 2 else {}
    open(out, "w").write(build(cfg))
    print("wrote", out)
```

```python
import math, struct, sys

NAME = "interleave_layers__grouped_kv_mqa__mixer_channel_mlp__prompt"
ARG = dict(x=0, wq=8, wk=16, wv=24, wo=32, bx=40, w1=48, b1=56, w2=64, b2=72, out=80, dbg=88, ws=96)
WS_WQ, WS_WO, WS_W1, WS_W2 = 0x0, 0x280000, 0x500000, 0xD00000
WS_WKV, WS_AUGQ, WS_AUGKV, WS_STAMP = 0x1480000, 0x14A0000, 0x14B0000, 0x14C0000
LBASE, LSTRIDE = 0x1600000, 0x1E80000
CSTR = 4352
L_X, L_O, L_X1, L_H = 0x0, 0x480000, 0x900000, 0xD80000
L_KV, L_STA, L_STB, L_CNT = 0x1C00000, 0x1C40000, 0x1C80000, 0x1CC0000
C_X, C_O, C_X1, C_H, C_KV2, C_KV, C_W, C_D, C_D2 = 0, 64, 128, 192, 256, 320, 336, 352, 368
NCNT = 384
WS_SIZE = LBASE + 2 * LSTRIDE
EPS = 1e-5
LOG2E = math.log2(math.e)
K1 = 1024

S_WAVE, S_W4, S_RB, S_CT = 20, 21, 22, 23
SRD_WS, SRD_KV, SRD_OUT, SRD_B = 24, 28, 32, 36
S_L, S_LAYER = 40, 41
S_T0, S_T1, S_T2, S_T3, S_T4, S_T5 = 42, 43, 44, 45, 46, 47
S_CNT, S_SLOT, S_AOFF, S_WOFF, S_KVOFF, S_SEL, S_MASK, S_M0 = 48, 49, 50, 51, 52, 53, 54, 55
S_D0, S_D1, S_SPIN, S_RT = 56, 57, 58, 59
S_MSK = 60
SRD_P, SRD_DBG, SRD_B1 = 64, 68, 88
S_ROW, S_SRC, S_DST, S_KBS, S_AUG, S_BIAS, S_Q, S_LR, S_CB, S_PO = 72, 73, 74, 75, 76, 77, 78, 79, 85, 86
VL16, VZ, VST = 1, 2, 3
RES, WKV = 224, 192

CFG = {}


def f2u(x):
    return struct.unpack("<I", struct.pack("<f", x))[0]


def hexf(x):
    return hex(f2u(x))


class Asm:
    def __init__(self):
        self.l = []
        self.n = 0

    def __call__(self, s=""):
        for line in s.split("\n"):
            line = line.strip()
            if line:
                self.l.append(line if line.endswith(":") or line.startswith(".") else "    " + line)

    def label(self, base):
        self.n += 1
        return f".L{base}_{self.n}"

    def text(self):
        return "\n".join(self.l)


class Rec(list):
    def __call__(self, s=""):
        self.extend(x.strip() for x in s.split("\n") if x.strip())


def vr(a, n=1):
    return f"v{a}" if n == 1 else f"v[{a}:{a+n-1}]"


def sr(a, n=1):
    return f"s{a}" if n == 1 else f"s[{a}:{a+n-1}]"


WSD = sr(SRD_WS, 4)


def m16(d, a, b, c=None):
    return f"v_mfma_f32_16x16x32_bf16 {vr(d,4)}, {vr(a,4)}, {vr(b,4)}, {c or vr(d,4)}"


def m32(d, a, b, c=None):
    return f"v_mfma_f32_32x32x16_bf16 {vr(d,16)}, {vr(a,4)}, {vr(b,4)}, {c or vr(d,16)}"


def make_srd(e, dst, src, size):
    e(f"s_mov_b32 s{dst}, s{src}")
    e(f"s_mov_b32 s{dst+1}, s{src+1}")
    e(f"s_mov_b32 s{dst+2}, {hex(size)}")
    e(f"s_mov_b32 s{dst+3}, 0x20000")


def stamp(e, i):
    if not CFG.get("stamps"):
        return
    e("s_memrealtime s[80:81]")
    e("s_memtime s[82:83]")
    e(f"s_lshl_b32 s84, s{S_LAYER}, 4")
    e(f"s_add_u32 m0, s84, {i}")
    e("s_waitcnt lgkmcnt(0)")
    e(f"v_writelane_b32 v{VST}, s80, m0")
    e("s_add_u32 m0, m0, 32")
    e(f"v_writelane_b32 v{VST}, s82, m0")


def stamp_flush(e):
    if not CFG.get("stamps"):
        return
    e("s_lshl_b32 s80, s2, 3")
    e(f"s_add_u32 s80, s80, s{S_WAVE}")
    e("s_lshl_b32 s80, s80, 8")
    e(f"s_add_u32 s80, s80, {hex(WS_STAMP)}")
    e("v_lshlrev_b32 v4, 2, v0")
    e(f"buffer_store_dword v{VST}, v4, {WSD}, s80 offen")


def cnt_off(e, dst, base, idx_sgpr, nxt=False):
    e(f"s_mul_i32 s{dst}, s{idx_sgpr}, {CSTR}")
    e(f"s_add_u32 s{dst}, s{dst}, s{S_L}")
    e(f"s_add_u32 s{dst}, s{dst}, {hex(L_CNT + CSTR*base + (LSTRIDE if nxt else 0))}")


VSIG = 15


def signal(e, base, idx_sgpr, nxt=False):
    cnt_off(e, S_T5, base, idx_sgpr, nxt)
    e(f"v_mov_b32 v{VSIG}, 1")
    e("s_waitcnt vmcnt(0)")
    e("s_mov_b64 exec, 1")
    e(f"buffer_atomic_add v{VSIG}, v{VZ}, {WSD}, s{S_T5} offen sc0 sc1")
    e("s_mov_b64 exec, -1")


def poll(e, target, signalled):
    lp, ok = e.label("poll"), e.label("pollok")
    e(f"s_mov_b32 s{S_SPIN}, 0x40000")
    e("s_mov_b64 exec, 1")
    if signalled:
        e("s_waitcnt vmcnt(0)")
        e(f"v_cmp_gt_u32 vcc, {target-1}, v{VSIG}")
        e(f"s_cbranch_vccz {ok}")
    e(f"{lp}:")
    e(f"v_mov_b32 v{VSIG}, 0")
    e(f"buffer_atomic_add v{VSIG}, v{VZ}, {WSD}, s{S_T5} offen sc0 sc1")
    e("s_waitcnt vmcnt(0)")
    e(f"v_cmp_gt_u32 vcc, {target}, v{VSIG}")
    e(f"s_cbranch_vccz {ok}")
    e(f"s_sub_u32 s{S_SPIN}, s{S_SPIN}, 1")
    e(f"s_cbranch_scc0 {lp}")
    e(f"{ok}:")
    e("s_mov_b64 exec, -1")


def add16(e, base, width=16):
    e(f"v_mul_u32_u24 v4, {CSTR}, v0")
    e("v_mov_b32 v5, 1")
    e(f"s_add_u32 s{S_T5}, s{S_L}, {hex(L_CNT + CSTR*base)}")
    if width == 16:
        e("s_mov_b64 exec, 0xffff")
    e(f"buffer_atomic_add v5, v4, {WSD}, s{S_T5} offen sc1")
    e("s_mov_b64 exec, -1")


def fan_out(e, base, n, width=16):
    no = e.label("nofan")
    e("s_waitcnt vmcnt(0)")
    e(f"v_readfirstlane_b32 s{S_T0}, v{VSIG}")
    e("s_nop 0")
    e(f"s_cmp_lg_u32 s{S_T0}, {n-1}")
    e(f"s_cbranch_scc1 {no}")
    add16(e, base, width)
    e(f"{no}:")


def wait_init(e):
    lp, ok = e.label("init"), e.label("initok")
    e(f"s_mov_b32 s{S_SPIN}, 0x40000")
    e(f"{lp}:")
    e(f"buffer_load_dword v{VSIG}, v{VZ}, {sr(SRD_DBG,4)}, 0 offen sc1")
    e("s_waitcnt vmcnt(0)")
    e(f"v_cmp_eq_u32 vcc, 0, v{VSIG}")
    e(f"s_cbranch_vccz {ok}")
    e("s_sleep 2")
    e(f"s_sub_u32 s{S_SPIN}, s{S_SPIN}, 1")
    e(f"s_cbranch_scc0 {lp}")
    e(f"{ok}:")


def split3(e, z, rem, rem2, tmp):
    e(f"v_and_b32 v{tmp}, s{S_MASK}, v{z}")
    e(f"v_sub_f32 v{rem}, v{z}, v{tmp}")
    e(f"v_and_b32 v{tmp}, s{S_MASK}, v{rem}")
    e(f"v_sub_f32 v{rem2}, v{rem}, v{tmp}")


def pack_hi(e, d, lo, hi):
    e(f"v_perm_b32 v{d}, v{hi}, v{lo}, s{S_SEL}")


def stats_loads(e, ST, base, rt_sgpr, vtmp):
    e(f"s_lshl_b32 s{S_T4}, s{rt_sgpr}, 12")
    e(f"s_add_u32 s{S_T4}, s{S_T4}, s{S_L}")
    e(f"s_add_u32 s{S_T4}, s{S_T4}, {hex(base)}")
    e(f"v_lshlrev_b32 v{vtmp}, 2, v0")
    for c in range(16):
        e(f"buffer_load_dword v{ST+c}, v{vtmp}, {WSD}, s{S_T4} offen offset:{256*c} sc1")


def ln_scalars(e, ST, double):
    for w in (8, 4, 2, 1):
        for c in range(w):
            e(f"v_add_f32 v{ST+c}, v{ST+c}, v{ST+c+w}")
    e(f"v_mov_b32 v{ST+1}, v{ST}")
    e("s_nop 1")
    e(f"v_permlane32_swap_b32 v{ST}, v{ST+1}")
    e(f"v_mul_f32 v{ST+2}, {hexf(-1.0/1024)}, v{ST}")
    e(f"v_mul_f32 v{ST+4}, {hexf(1.0/1024)}, v{ST+1}")
    e(f"v_fma_f32 v{ST+4}, -v{ST+2}, v{ST+2}, v{ST+4}")
    e(f"v_max_f32 v{ST+4}, 0, v{ST+4}")
    e(f"v_add_f32 v{ST+5}, {hexf(EPS)}, v{ST+4}")
    e(f"v_rsq_f32 v{ST+3}, v{ST+5}")
    e("s_nop 0")
    if double:
        e(f"v_mul_f32 v{ST+5}, v{ST+3}, v{ST+3}")
        e(f"v_mul_f32 v{ST+5}, v{ST+5}, v{ST+4}")
        e(f"v_add_f32 v{ST+5}, {hexf(EPS)}, v{ST+5}")
        e(f"v_rsq_f32 v{ST+5}, v{ST+5}")
        e("s_nop 0")
        e(f"v_mul_f32 v{ST+3}, v{ST+3}, v{ST+5}")


def spread(e, pairs):
    for a, b in pairs:
        e(f"v_mov_b32 v{b}, v{a}")
    e("s_nop 1")
    for a, b in pairs:
        e(f"v_permlane16_swap_b32 v{a}, v{b}")


def xaug(e, ST, XA, bias):
    split3(e, ST + 2, ST + 8, ST + 9, ST + 10)
    pack_hi(e, XA, ST + 2, ST + 8)
    pack_hi(e, XA + 2, ST + 9, ST + 2)
    pairs = [(XA, XA + 4), (XA + 2, XA + 6)]
    if bias:
        e(f"v_rcp_f32 v{ST+6}, v{ST+3}")
        e("s_nop 0")
        split3(e, ST + 6, ST + 8, ST + 9, ST + 10)
        pack_hi(e, ST + 11, ST + 6, ST + 8)
        e(f"v_lshrrev_b32 v{ST+13}, 16, v{ST+9}")
        pairs += [(ST + 11, ST + 12), (ST + 13, ST + 14)]
    spread(e, pairs)
    e(f"v_mov_b32 v{XA+1}, v{XA}")
    e(f"v_mov_b32 v{XA+5}, v{XA+4}")
    if bias:
        e("v_cmp_gt_u32 vcc, 32, v0")
        e("s_nop 1")
        e(f"v_cndmask_b32 v{XA+3}, 0, v{ST+13}, vcc")
        e(f"v_cndmask_b32 v{XA+7}, 0, v{ST+14}, vcc")
        e("v_cmp_gt_u32 vcc, 16, v0")
        e("s_nop 1")
        e(f"v_cndmask_b32 v{XA+3}, v{XA+3}, v{ST+11}, vcc")
        e(f"v_cndmask_b32 v{XA+7}, v{XA+7}, v{ST+12}, vcc")
    else:
        e(f"v_mov_b32 v{XA+3}, 0")
        e(f"v_mov_b32 v{XA+7}, 0")


def rbstr(kbtot):
    return kbtot * 8192 + CFG.get("xpad", 0)


def pstr(kbtot):
    return kbtot * 4096 + CFG.get("ppad", 0)


def tf_soff(e, dst, base, kbtot, kbper, nxt=False):
    e(f"s_mul_i32 s{dst}, s{S_RB}, {rbstr(kbtot)}")
    if kbper:
        e(f"s_mul_i32 s{S_T4}, s{S_CT}, {kbper*8192}")
        e(f"s_add_u32 s{dst}, s{dst}, s{S_T4}")
    e(f"s_lshl_b32 s{S_T4}, s{S_W4}, 11")
    e(f"s_add_u32 s{dst}, s{dst}, s{S_T4}")
    e(f"s_add_u32 s{dst}, s{dst}, s{S_L}")
    off = base + (LSTRIDE if nxt else 0)
    if off:
        e(f"s_add_u32 s{dst}, s{dst}, {hex(off)}")


def pack_pair(e, src, dst):
    for a in range(2):
        for u in range(2):
            for r in range(2):
                s = src + 8 * u + 4 * a + 2 * r
                e(f"v_cvt_pk_bf16_f32 v{dst+4*a+2*u+r}, v{s}, v{s+1}")


def stats_out(e, SRC, T, base, nxt=False, sc="sc1"):
    for a in range(2):
        s, q = T + 4 * a, T + 4 * a + 2
        regs = [SRC + 8 * u + 4 * a + 2 * r for u in range(4) for r in range(2)]
        e(f"v_pk_add_f32 {vr(s,2)}, {vr(regs[0],2)}, {vr(regs[1],2)}")
        e(f"v_pk_mul_f32 {vr(q,2)}, {vr(regs[0],2)}, {vr(regs[0],2)}")
        e(f"v_pk_fma_f32 {vr(q,2)}, {vr(regs[1],2)}, {vr(regs[1],2)}, {vr(q,2)}")
        for x in regs[2:]:
            e(f"v_pk_add_f32 {vr(s,2)}, {vr(s,2)}, {vr(x,2)}")
            e(f"v_pk_fma_f32 {vr(q,2)}, {vr(x,2)}, {vr(x,2)}, {vr(q,2)}")
    for k in range(4):
        e(f"v_add_f32 v{T+2*k}, v{T+2*k}, v{T+2*k+1}")
    e(f"s_lshl_b32 s{S_T4}, s{S_RT}, 4")
    e(f"s_add_u32 s{S_T4}, s{S_T4}, s{S_CT}")
    e(f"v_permlane16_swap_b32 v{T}, v{T+4}")
    e(f"v_permlane16_swap_b32 v{T+2}, v{T+6}")
    e(f"v_add_f32 v{T}, v{T}, v{T+4}")
    e(f"v_add_f32 v{T+2}, v{T+2}, v{T+6}")
    e(f"s_lshl_b32 s{S_T4}, s{S_T4}, 8")
    e(f"s_add_u32 s{S_T4}, s{S_T4}, s{S_L}")
    e(f"v_permlane32_swap_b32 v{T}, v{T+2}")
    e(f"s_add_u32 s{S_T4}, s{S_T4}, {hex(base + (LSTRIDE if nxt else 0))}")
    e(f"v_lshlrev_b32 v{T+8}, 2, v0")
    e(f"v_add_f32 v{T}, v{T}, v{T+2}")
    e(f"buffer_store_dword v{T}, v{T+8}, {WSD}, s{S_T4} offen {sc}")


def rm_voff(e, v, tmp):
    e(f"s_lshl_b32 s{S_T0}, s{S_RT}, 16")
    e(f"s_lshl_b32 s{S_T1}, s{S_CT}, 7")
    e(f"s_add_u32 s{S_T0}, s{S_T0}, s{S_T1}")
    e(f"v_and_b32 v{v}, 15, v0")
    e(f"v_lshl_add_u32 v{v}, v{v}, 11, s{S_T0}")
    e(f"v_bfe_u32 v{tmp}, v0, 4, 1")
    e(f"v_lshl_add_u32 v{v}, v{tmp}, 5, v{v}")
    e(f"v_lshrrev_b32 v{tmp}, 5, v0")
    e(f"v_lshl_add_u32 v{v}, v{tmp}, 4, v{v}")


class DLoop:
    def __init__(self, ACC, NWF, AR, DA, WR, NB, LA):
        self.ACC, self.NWF, self.AR, self.DA, self.WR, self.NB, self.LA = ACC, NWF, AR, DA, WR, NB, LA

    def aload(self, e, slot):
        for a in range(2):
            r = self.AR + 8 * slot + 4 * a
            e(f"buffer_load_dwordx4 {vr(r,4)}, v{VL16}, {WSD}, s{S_AOFF} offen offset:{1024*a} sc1")
        e(f"s_add_u32 s{S_AOFF}, s{S_AOFF}, 8192")

    def wdst(self, f):
        return self.WR + 4 * (f % self.NB)

    def step(self, e, f0, areg, vm, wread, reload_slot=None, pre=None, fill=None, nfill=2):
        for u in range(self.NWF):
            f = f0 + u
            if pre and f in pre:
                pre[f]()
            pend = sum(wread(x) is not None for x in range(f + 1, f + self.LA))
            if u == 0 and vm is not None:
                e(f"s_waitcnt vmcnt({vm}) lgkmcnt({pend})")
            else:
                e(f"s_waitcnt lgkmcnt({pend})")
            order = (0, 1) if u % 2 == 0 else (1, 0)
            e(m16(self.ACC + 8 * u + 4 * order[0], self.wdst(f), areg + 4 * order[0]))
            r = wread(f + self.LA)
            if r:
                e(r)
            e(m16(self.ACC + 8 * u + 4 * order[1], self.wdst(f), areg + 4 * order[1]))
            if fill:
                for _ in range(min(nfill, len(fill))):
                    e(fill.pop(0))
        if reload_slot is not None:
            self.aload(e, reload_slot)


def resident_gemm(e, ACC, bar_at, DA, gap=0, tail_loads=None, ntail=0, fill=None):
    AR, WR, NB, LA = 48, 112, 8, CFG.get("la_res", 5)
    d = DLoop(ACC, 4, AR, DA, WR, NB, LA)
    VW1, VW2 = 6, 7
    e(f"v_add_u32 v{VW1}, {48*K1}, v{VL16}")
    e(f"v_add_u32 v{VW2}, {96*K1 + gap}, v{VL16}")

    def wread(f):
        if f >= 128:
            return None
        return f"ds_read_b128 {vr(d.wdst(f),4)}, v{(VL16, VW1, VW2)[f // 48]} offset:{(f % 48)*1024}"

    for s in range(DA):
        d.aload(e, s)
    for f in range(LA):
        e(wread(f))
    pre = {bar_at: lambda: e("s_barrier")} if bar_at is not None else {}
    for k in range(32):
        tail = k >= 32 - DA
        if k == 22 and tail_loads:
            tail_loads()
        vm = 2 * (31 - k) if tail else 2 * (DA - 1)
        if 22 <= k < 22 + DA:
            vm += ntail
        d.step(e, 4 * k, AR + 8 * (k % DA), vm, wread, None if tail else k % DA, pre,
               fill if k >= 28 else None, 4)
    if fill:
        for x in fill:
            e(x)


def ring_gemm(e, d, SPS, NS, RW, VW, extra, tail_loads=None, ntail=0, fill=None, XA=None):
    nfr, wst = d.NWF * SPS, 28 * K1
    LA, DA = d.LA, d.DA
    unroll = 1
    while (unroll * SPS) % DA:
        unroll += 1
    assert unroll * SPS == DA and NS % unroll == 0 and nfr % d.NB == 0
    e(f"v_mov_b32 v{VW}, v{VL16}")
    e(f"s_mov_b32 s{S_SLOT}, 0")
    e(f"s_mov_b32 s{S_D0}, {hex((-(RW-1)*wst) & 0xffffffff)}")
    e(f"s_mov_b32 s{S_D1}, {wst}")
    for s in range(DA):
        d.aload(e, s)
    e("s_barrier")

    def rd(f):
        return f"ds_read_b128 {vr(d.wdst(f),4)}, v{VW} offset:{(f % nfr)*1024}"

    def advance():
        e(f"s_add_u32 s{S_SLOT}, s{S_SLOT}, {wst}")
        e(f"s_cmp_eq_u32 s{S_SLOT}, {RW*wst}")
        e(f"s_cselect_b32 s{S_SLOT}, 0, s{S_SLOT}")
        e(f"s_cselect_b32 s{S_T0}, s{S_D0}, s{S_D1}")
        e(f"v_add_u32 v{VW}, s{S_T0}, v{VW}")
        e("s_barrier")

    for f in range(LA):
        e(rd(f))
    e(f"s_movk_i32 s{S_CNT}, {NS//unroll - 1}")
    lp = e.label("ring")
    e(".p2align 3")
    e(f"{lp}:")
    pre = {(st + 1) * nfr - LA: advance for st in range(unroll)}
    for k in range(DA):
        d.step(e, k * d.NWF, d.AR + 8 * k, 2 * (DA - 1), rd, k, pre)
    e(f"s_sub_u32 s{S_CNT}, s{S_CNT}, 1")
    e(f"s_cmp_lg_u32 s{S_CNT}, 0")
    e(f"s_cbranch_scc1 {lp}")
    lim = unroll * nfr + (d.NWF if extra else 0)
    rdt = lambda f: rd(f) if f < lim else None
    if not extra:
        del pre[unroll * nfr - LA]
    if tail_loads:
        tail_loads()
    for k in range(DA):
        d.step(e, k * d.NWF, d.AR + 8 * k, 2 * (DA - 1 - k) + ntail, rdt, None, pre, fill if k >= DA - 2 else None, 3)
    if fill:
        for x in fill:
            e(x)
    if extra:
        e("s_nop 1")
        d.step(e, DA * d.NWF, XA, None, rdt)


def dma_run(e, n, lds_imm, thr=None):
    for i in range(n):
        if i % 4 == 0:
            e(f"s_add_u32 m0, s{S_M0}, {lds_imm + i*1024}")
            e(f"s_add_u32 s{S_T0}, s{S_WOFF}, {i*1024}")
        if thr is not None:
            e(f"s_waitcnt vmcnt({thr})")
        e(f"buffer_load_dwordx4 v{VL16}, {WSD}, s{S_T0} offen offset:{(i % 4)*1024} sc1 lds")


def ring_loader(e, base, panel, NS, RW, extra):
    wst = 28 * K1
    thr = CFG.get("thr")
    e(f"s_mul_i32 s{S_M0}, s{S_W4}, 7168")
    e(f"s_mul_i32 s{S_WOFF}, s{S_CT}, {panel}")
    e(f"s_add_u32 s{S_WOFF}, s{S_WOFF}, s{S_M0}")
    e(f"s_add_u32 s{S_WOFF}, s{S_WOFF}, {hex(base)}")
    last = NS if extra else NS - 1
    cnt = lambda s: 7 if s < NS else 4
    issued = []

    def issue(s, t):
        if s == NS:
            e(f"s_mul_i32 s{S_T1}, s{S_W4}, 3072")
            e(f"s_sub_u32 s{S_M0}, s{S_M0}, s{S_T1}")
            e(f"s_sub_u32 s{S_WOFF}, s{S_WOFF}, s{S_T1}")
        dma_run(e, cnt(s), (s % RW) * wst, t)
        e(f"s_add_u32 s{S_WOFF}, s{S_WOFF}, {wst}")
        issued.append(s)

    for s in range(RW):
        issue(s, CFG.get("thr_pre"))
    for s in range(last + 1):
        e(f"s_waitcnt vmcnt({sum(cnt(x) for x in issued if x > s)})")
        e("s_barrier")
        if s >= 2 and s - 2 + RW <= last:
            issue(s - 2 + RW, thr)


AQ, AONE, AL, AO, AK, AV, AS = 16, 32, 36, 44, 76, 92, 108
AIDX, AVB, AOA = 7, 8, 9
LDS_KVX, LDS_RING = 144 * K1, 96 * K1
SLOT = lambda c: ((c + 2) % 4) * 16 * K1


def kv_piece(e):
    XF, ST, ACC, AUG, XA, T = 16, 48, 64, 72, 80, 88
    e(f"s_lshr_b32 s{S_T2}, s{S_CT}, 2")
    e(f"s_lshl_b32 s{S_T3}, s{S_RB}, 2")
    e(f"s_add_u32 s{S_T3}, s{S_T3}, s{S_T2}")
    e(f"s_lshl_b32 s{S_T0}, s{S_W4}, 6")
    e(f"s_lshr_b32 s{S_T1}, s{S_CT}, 1")
    e(f"s_add_u32 s{S_T0}, s{S_T0}, s{S_T1}")
    e(f"s_lshl_b32 s{S_T0}, s{S_T0}, 10")
    e(f"s_mul_i32 s{S_T1}, s{S_RB}, {rbstr(32)}")
    e(f"s_add_u32 s{S_T0}, s{S_T0}, s{S_T1}")
    e(f"s_add_u32 s{S_T0}, s{S_T0}, s{S_L}")
    stats_loads(e, ST, L_STA, S_T3, 4)
    for i in range(8):
        e(f"buffer_load_dwordx4 {vr(XF+4*i,4)}, v{VL16}, {WSD}, s{S_T0} offen sc1")
        e(f"s_add_u32 s{S_T0}, s{S_T0}, 8192")
    e(f"s_and_b32 s{S_T0}, s{S_CT}, 1")
    e(f"s_lshl_b32 s{S_T0}, s{S_T0}, 11")
    e(f"s_add_u32 s{S_T0}, s{S_T0}, {hex(WS_AUGKV)}")
    for u in range(2):
        e(f"buffer_load_dwordx4 {vr(AUG+4*u,4)}, v{VL16}, {WSD}, s{S_T0} offen offset:{1024*u} sc1")
    e("s_waitcnt vmcnt(10)")
    ln_scalars(e, ST, False)
    xaug(e, ST, XA, False)
    spread(e, [(ST + 3, ST + 4)])
    e(f"s_bitcmp1_b32 s{S_CT}, 1")
    e(f"s_cselect_b64 {sr(S_MSK,2)}, -1, 0")
    for i in range(3):
        e(f"v_cndmask_b32 v{XA+i}, v{XA+i}, v{XA+4+i}, {sr(S_MSK,2)}")
    e(f"v_cndmask_b32 v{ST+4}, v{ST+3}, v{ST+4}, {sr(S_MSK,2)}")
    for i in range(8):
        e(f"s_waitcnt vmcnt({9-i})")
        for u in range(2):
            e(m16(ACC + 4 * u, WKV + 8 * i + 4 * u, XF + 4 * i, "0" if i == 0 else None))
    noaug = e.label("noaug")
    e("s_waitcnt vmcnt(0)")
    e(f"s_cmp_lg_u32 s{S_W4}, 0")
    e(f"s_cbranch_scc1 {noaug}")
    for u in range(2):
        e(m16(ACC + 4 * u, AUG + 4 * u, XA))
    e(f"{noaug}:")
    e(f"s_lshl_b32 s{S_T0}, s{S_W4}, 11")
    e(f"s_add_u32 s{S_T0}, s{S_T0}, {LDS_KVX}")
    e(f"v_add_u32 v4, s{S_T0}, v{VL16}")
    e(f"v_mov_b32 v5, {LDS_KVX + 10*K1}")
    e("v_mov_b32 v6, 1")
    e("s_nop 3")
    for i in range(0, 8, 2):
        e(f"v_pk_mul_f32 {vr(ACC+i,2)}, {vr(ACC+i,2)}, {vr(ST+4,2)} op_sel_hi:[1,0]")
    for u in range(2):
        e(f"ds_write_b128 v4, {vr(ACC+4*u,4)} offset:{1024*u}")
    e("s_waitcnt lgkmcnt(0)")
    e("s_mov_b64 exec, 1")
    e("ds_add_rtn_u32 v6, v5, v6")
    e("s_waitcnt lgkmcnt(0)")
    e(f"v_readfirstlane_b32 s{S_T0}, v6")
    e("s_mov_b64 exec, -1")
    done, isv, fin = e.label("kvdone"), e.label("isv"), e.label("kvfin")
    e(f"s_cmp_lg_u32 s{S_T0}, 3")
    e(f"s_cbranch_scc1 {done}")
    e(f"v_add_u32 v4, {LDS_KVX}, v{VL16}")
    for j in range(8):
        e(f"ds_read_b128 {vr(XF+4*j,4)}, v4 offset:{1024*j}")
    e(f"s_lshl_b32 s{S_T0}, s{S_T3}, 12")
    e(f"s_add_u32 s{S_T0}, s{S_T0}, s{S_L}")
    e(f"s_add_u32 s{S_T0}, s{S_T0}, {hex(L_KV)}")
    e(f"s_bfe_u32 s{S_T1}, s{S_CT}, 0x10001")
    e("s_waitcnt lgkmcnt(0)")
    for w in (16, 8):
        for i in range(0, w, 2):
            e(f"v_pk_add_f32 {vr(XF+i,2)}, {vr(XF+i,2)}, {vr(XF+i+w,2)}")
    for r in range(4):
        e(f"v_cvt_pk_bf16_f32 v{T+r}, v{XF+2*r}, v{XF+2*r+1}")
    e("v_and_b32 v4, 15, v0")
    e("v_bfe_u32 v5, v0, 4, 1")
    e("v_lshrrev_b32 v6, 5, v0")
    e(f"s_bitcmp1_b32 s{S_CT}, 0")
    e(f"s_cbranch_scc1 {isv}")
    e(f"s_lshl_b32 s{S_T1}, s{S_T1}, 8")
    e(f"s_add_u32 s{S_T0}, s{S_T0}, s{S_T1}")
    e("v_lshlrev_b32 v4, 4, v4")
    e("v_lshl_add_u32 v4, v5, 10, v4")
    e("v_lshl_add_u32 v4, v6, 9, v4")
    e(f"buffer_store_dwordx4 {vr(T,4)}, v4, {WSD}, s{S_T0} offen sc1")
    e(f"s_branch {fin}")
    e(f"{isv}:")
    e(f"s_lshl_b32 s{S_T1}, s{S_T1}, 10")
    e(f"s_add_u32 s{S_T0}, s{S_T0}, s{S_T1}")
    e("v_lshlrev_b32 v4, 6, v4")
    e("v_lshrrev_b32 v10, 4, v0")
    e("v_lshl_add_u32 v4, v10, 3, v4")
    e(f"v_add_u32 v4, {LDS_KVX + 8*K1}, v4")
    e(f"ds_write_b64 v4, {vr(T,2)}")
    e(f"ds_write_b64 v4, {vr(T+2,2)} offset:32")
    e("v_bfe_u32 v4, v0, 2, 2")
    e("v_lshl_add_u32 v4, v6, 3, v4")
    e("v_lshlrev_b32 v4, 6, v4")
    e("v_lshl_add_u32 v4, v5, 5, v4")
    e("v_and_b32 v10, 3, v0")
    e("v_lshl_add_u32 v4, v10, 3, v4")
    e(f"v_add_u32 v4, {LDS_KVX + 8*K1}, v4")
    e("s_waitcnt lgkmcnt(0)")
    e(f"ds_read_b64_tr_b16 {vr(T+4,2)}, v4")
    e(f"ds_read_b64_tr_b16 {vr(T+6,2)}, v4 offset:256")
    e("s_waitcnt lgkmcnt(0)")
    e(f"buffer_store_dwordx4 {vr(T+4,4)}, v{VL16}, {WSD}, s{S_T0} offen offset:2048 sc1")
    e(f"{fin}:")
    signal(e, C_KV, S_RB)
    fan_out(e, C_KV2, 16, 64)
    e(f"{done}:")


def attention(e):
    e(f"v_add_u32 v{AVB}, {LDS_RING}, v{VL16}")
    toff = lambda T: SLOT(T // 4) + (T % 4) * 4096
    rdk = lambda T, m: f"ds_read_b128 {vr(AK+8*(T % 2)+4*m,4)}, v{AVB} offset:{toff(T)+1024*m}"
    rdv = lambda T, m: f"ds_read_b128 {vr(AV+8*(T % 2)+4*m,4)}, v{AVB} offset:{toff(T)+2048+1024*m}"
    s32 = lambda d, a, b: f"v_smfmac_f32_32x32x32_bf16 {vr(d,16)}, {vr(a,4)}, {vr(b,8)}, v{AIDX}"
    s16 = lambda d, a, b: f"v_smfmac_f32_16x16x64_bf16 {vr(d,4)}, {vr(a,4)}, {vr(b,8)}, v{AIDX}"
    e(f"v_mov_b32 v{AIDX}, 0xdddd")
    e("v_bfe_u32 v4, v0, 2, 1")
    e("v_cmp_eq_u32 vcc, 0, v4")
    e("v_mov_b32 v5, 0x3f803f80")
    for i in list(range(AL, AK)) + list(range(AV + 8, AV + 16)) + list(range(AS + 48, AS + 64)):
        e(f"v_mov_b32 v{i}, 0")
    e(f"v_cndmask_b32 v{AONE}, 0, v5, vcc")
    e(f"v_cndmask_b32 v{AONE+1}, 0, v5, vcc")
    e(f"v_xor_b32 v{AONE+2}, v5, v{AONE}")
    e(f"v_xor_b32 v{AONE+3}, v5, v{AONE}")
    e("s_barrier")
    stamp(e, 3)
    for m in range(2):
        e(rdk(0, m))
    for m in range(2):
        e(rdk(1, m))
    for m in range(2):
        e(rdv(0, m))
    e("s_waitcnt lgkmcnt(4)")
    e(m32(AS, AK, AQ, "0"))
    e(m32(AS, AK + 4, AQ + 4))
    e(f"s_movk_i32 s{S_CNT}, 4")
    e("s_nop 9")
    lp = e.label("att")
    e(".p2align 3")
    e(f"{lp}:")
    for u in range(32):
        sc, sn, sp = AS + 16 * (u % 4), AS + 16 * ((u + 1) % 4), AS + 16 * ((u + 3) % 4)
        hn, hp, tn, tp = (u + 1) % 2, (u - 1) % 2, (u + 1) // 2, (u - 1) // 2
        kb, vb = AK + 8 * (tn % 2), AV + 8 * (tp % 2)
        q, o, l = AQ + 8 * hn, AO + 16 * hp, AL + 4 * hp
        ex = [f"v_exp_f32 v{sc+i}, v{sc+i}" for i in range(16)]
        odd = u % 2 == 1
        rk = [rdk((tn + 1) % 16, m) for m in range(2)] if odd else ["", ""]
        rv = [rdv((tp + 1) % 16, m) for m in range(2)] if odd else ["", ""]
        if odd:
            e("s_waitcnt lgkmcnt(0)")
        e(m32(sn, kb, q, "0"))
        if u % 8 == 5:
            e("s_barrier")
        e(rk[0])
        for x in ex[0:3]:
            e(x)
        e(s32(o, vb, sp))
        e(rk[1])
        for x in ex[3:6]:
            e(x)
        e(s16(l, AONE, sp))
        for x in ex[6:8]:
            e(x)
        e(m32(sn, kb + 4, q + 4))
        e(rv[0])
        for x in ex[8:11]:
            e(x)
        e(s32(o, vb + 4, sp + 8))
        e(rv[1])
        for x in ex[11:14]:
            e(x)
        e(s16(l, AONE, sp + 8))
        for x in ex[14:16]:
            e(x)
    e(f"s_sub_u32 s{S_CNT}, s{S_CNT}, 1")
    e(f"s_cmp_lg_u32 s{S_CNT}, 0")
    e(f"s_cbranch_scc1 {lp}")
    sp = AS + 48
    e(s32(AO + 16, AV + 8, sp))
    e(s16(AL + 4, AONE, sp))
    e(s32(AO + 16, AV + 12, sp + 8))
    e(s16(AL + 4, AONE, sp + 8))
    stamp(e, 4)
    tf_soff(e, S_T2, L_O, 32, 2)
    e(f"s_add_u32 s{S_T3}, s{S_T2}, 8192")
    e(f"v_and_b32 v{AOA}, 15, v0")
    e(f"v_lshlrev_b32 v{AOA}, 4, v{AOA}")
    e("v_bfe_u32 v6, v0, 4, 1")
    e(f"v_lshl_add_u32 v{AOA}, v6, 10, v{AOA}")
    e("v_lshrrev_b32 v6, 5, v0")
    e(f"v_lshl_add_u32 v{AOA}, v6, 9, v{AOA}")
    e(f"v_pk_mul_f32 v[10:11], {vr(AO,2)}, 0 op_sel_hi:[1,0]")
    for i in range(2, 32, 2):
        e(f"v_pk_fma_f32 v[10:11], {vr(AO+i,2)}, 0, v[10:11] op_sel_hi:[1,0,1]")
    e("v_add_f32 v10, v10, v11")
    e(f"v_add_f32 v10, v10, v{AL}")
    lo, hi = CFG.get("lrange", (2.0 ** -32, 2.0 ** 64))
    e(f"s_mov_b32 s{S_T0}, {hexf(lo)}")
    e(f"s_mov_b32 s{S_T1}, {hexf(hi)}")
    e(f"v_cmp_nle_f32 {sr(S_MSK,2)}, s{S_T0}, v10")
    e(f"v_cmp_nge_f32 vcc, s{S_T1}, v10")
    e(f"s_or_b64 {sr(S_MSK,2)}, vcc, {sr(S_MSK,2)}")
    e(f"v_cmp_nle_f32 vcc, s{S_T0}, v{AL+4}")
    e(f"s_or_b64 {sr(S_MSK,2)}, vcc, {sr(S_MSK,2)}")
    e(f"v_cmp_nge_f32 vcc, s{S_T1}, v{AL+4}")
    e("s_waitcnt lgkmcnt(0)")
    e(f"s_or_b64 {sr(S_MSK,2)}, vcc, {sr(S_MSK,2)}")
    slow, back = e.label("slow"), e.label("back")
    e(f"s_cbranch_scc1 {slow}")
    e(f"{back}:")
    e(f"v_rcp_f32 v{AL}, v{AL}")
    e(f"v_rcp_f32 v{AL+4}, v{AL+4}")
    for hd in range(2):
        for i in range(0, 16, 2):
            x = AO + 16 * hd + i
            e(f"v_pk_mul_f32 {vr(x,2)}, {vr(x,2)}, {vr(AL+4*hd,2)} op_sel_hi:[1,0]")
        for r in range(8):
            e(f"v_cvt_pk_bf16_f32 v{AK+8*hd+r}, v{AO+16*hd+2*r}, v{AO+16*hd+2*r+1}")
        for m in range(2):
            e(f"buffer_store_dwordx4 {vr(AK+8*hd+4*m,4)}, v{AOA}, {WSD}, s{S_T2+hd} offen offset:{256*m} sc1")
    signal(e, C_O, S_RT)

    def slow_path():
        e(f"{slow}:")
        l1, l2 = e.label("sl1"), e.label("sl2")
        kvd = sr(SRD_KV, 4)
        e("v_mov_b32 v10, 0xff800000")
        e("v_mov_b32 v12, 0xff800000")
        e(f"s_mov_b32 s{S_T1}, 0")
        e(f"{l1}:")
        for m in range(2):
            e(f"buffer_load_dwordx4 {vr(AK+4*m,4)}, v{VL16}, {kvd}, s{S_T1} offen offset:{1024*m} sc1")
        e("s_waitcnt vmcnt(0)")
        for hd in range(2):
            e(m32(AS + 16 * hd, AK, AQ + 8 * hd, "0"))
            e(m32(AS + 16 * hd, AK + 4, AQ + 8 * hd + 4))
        e("s_nop 11")
        for hd in range(2):
            for i in range(0, 16, 2):
                e(f"v_max3_f32 v{10+2*hd}, v{AS+16*hd+i}, v{AS+16*hd+i+1}, v{10+2*hd}")
        e(f"s_add_u32 s{S_T1}, s{S_T1}, 4096")
        e(f"s_cmp_lt_u32 s{S_T1}, 0x40000")
        e(f"s_cbranch_scc1 {l1}")
        e("v_mov_b32 v11, v10")
        e("v_mov_b32 v13, v12")
        e("s_nop 1")
        e("v_permlane32_swap_b32 v10, v11")
        e("v_permlane32_swap_b32 v12, v13")
        e("v_max_f32 v10, v10, v11")
        e("v_max_f32 v12, v12, v13")
        for i in range(32):
            e(f"v_sub_f32 v{AS+32+i}, 0, v{10+2*(i // 16)}")
        for i in range(AL, AK):
            e(f"v_mov_b32 v{i}, 0")
        e(f"s_mov_b32 s{S_T1}, 0")
        e(f"{l2}:")
        for m in range(2):
            e(f"buffer_load_dwordx4 {vr(AK+4*m,4)}, v{VL16}, {kvd}, s{S_T1} offen offset:{1024*m} sc1")
            e(f"buffer_load_dwordx4 {vr(AV+4*m,4)}, v{VL16}, {kvd}, s{S_T1} offen offset:{2048+1024*m} sc1")
        e("s_waitcnt vmcnt(0)")
        for hd in range(2):
            e(m32(AS + 16 * hd, AK, AQ + 8 * hd, vr(AS + 32 + 16 * hd, 16)))
            e(m32(AS + 16 * hd, AK + 4, AQ + 8 * hd + 4))
        e("s_nop 11")
        for i in range(32):
            e(f"v_exp_f32 v{AS+i}, v{AS+i}")
        e("s_nop 1")
        for hd in range(2):
            for m in range(2):
                e(s32(AO + 16 * hd, AV + 4 * m, AS + 16 * hd + 8 * m))
                e(s16(AL + 4 * hd, AONE, AS + 16 * hd + 8 * m))
        e(f"s_add_u32 s{S_T1}, s{S_T1}, 4096")
        e(f"s_cmp_lt_u32 s{S_T1}, 0x40000")
        e(f"s_cbranch_scc1 {l2}")
        e("s_nop 11")
        e(f"s_branch {back}")

    return slow_path


JA, JB, JF, JO, JC = 10, 12, 16, 48, 52


def job_params(e, kind, j0):
    def src_off(cg, row):
        e(f"s_lshl_b32 s{S_T2}, s{S_Q}, 2")
        e(f"s_add_u32 s{S_T2}, s{S_T2}, s{S_W4}")
        e(f"s_mul_i32 s{S_SRC}, s{S_T2}, {64*row}")
        e(f"s_lshl_b32 s{S_T2}, s{cg}, 7")
        e(f"s_add_u32 s{S_SRC}, s{S_SRC}, s{S_T2}")

    def panel64(base, kbtot):
        e(f"s_lshl_b32 s{S_DST}, s{S_Q}, 5")
        e(f"s_add_u32 s{S_DST}, s{S_DST}, s{S_W4}")
        e(f"s_lshl_b32 s{S_DST}, s{S_DST}, 10")
        e(f"s_mul_i32 s{S_T2}, s{S_T1}, {pstr(kbtot)}")
        e(f"s_add_u32 s{S_DST}, s{S_DST}, s{S_T2}")
        if base:
            e(f"s_add_u32 s{S_DST}, s{S_DST}, {hex(base)}")

    e(f"s_mov_b32 s{S_LR}, {64 if kind == 'kv' else 128}")
    e(f"s_mov_b32 s{S_PO}, {1 if kind == 'wo' else 0}")
    e(f"s_mov_b32 s{S_ROW}, {dict(w1=7168, kv=128).get(kind, 2048)}")
    e(f"s_mov_b32 s{S_KBS}, {dict(w1=14*K1, kv=2048).get(kind, 4096)}")
    e(f"s_lshl_b32 s{S_CB}, s{S_W4}, 5")
    e(f"s_mov_b32 s{S_AUG}, 0")
    e(f"s_sub_u32 s{S_T3}, s2, {j0}")
    if kind == "w1":
        make_srd(e, SRD_P, 16, 7340032)
        e(f"s_lshr_b32 s{S_T1}, s{S_T3}, 2")
        e(f"s_and_b32 s{S_Q}, s{S_T3}, 3")
        src_off(S_T1, 7168)
        e(f"s_lshl_b32 s{S_T1}, s{S_T1}, 2")
        e(f"s_add_u32 s{S_T1}, s{S_T1}, s{S_W4}")
        e(f"s_lshl_b32 s{S_BIAS}, s{S_T1}, 5")
        e(f"s_mul_hi_u32 s{S_T2}, s{S_T1}, {(1 << 32)//14 + 1}")
        e(f"s_mul_i32 s{S_T3}, s{S_T2}, 14")
        e(f"s_sub_u32 s{S_T3}, s{S_T1}, s{S_T3}")
        e(f"s_mul_i32 s{S_T2}, s{S_T2}, {33*14}")
        e(f"s_add_u32 s{S_T2}, s{S_T2}, s{S_T3}")
        e(f"s_lshl_b32 s{S_T2}, s{S_T2}, 10")
        e(f"s_add_u32 s{S_T2}, s{S_T2}, {hex(WS_W1)}")
        e(f"s_add_u32 s{S_AUG}, s{S_T2}, {32*14*K1}")
        e(f"s_mul_i32 s{S_DST}, s{S_Q}, {8*14*K1}")
        e(f"s_add_u32 s{S_DST}, s{S_DST}, s{S_T2}")
    elif kind == "kv":
        e(f"s_bitcmp1_b32 s{S_W4}, 1")
        e("s_cselect_b32 s8, s10, s8")
        e("s_cselect_b32 s9, s11, s9")
        make_srd(e, SRD_P, 8, 65536)
        e(f"s_mov_b32 s{S_Q}, s{S_T3}")
        e(f"s_and_b32 s{S_T1}, s{S_W4}, 1")
        e(f"s_lshr_b32 s{S_T2}, s{S_W4}, 1")
        e(f"s_lshl_b32 s{S_SRC}, s{S_Q}, 1")
        e(f"s_add_u32 s{S_SRC}, s{S_SRC}, s{S_T1}")
        e(f"s_lshl_b32 s{S_SRC}, s{S_SRC}, 13")
        e(f"s_lshl_b32 s{S_CB}, s{S_T2}, 14")
        e(f"s_lshl_b32 s{S_T3}, s{S_T1}, 5")
        e(f"s_add_u32 s{S_CB}, s{S_CB}, s{S_T3}")
        e(f"s_lshl_b32 s{S_DST}, s{S_T2}, 2")
        e(f"s_add_u32 s{S_DST}, s{S_DST}, s{S_Q}")
        e(f"s_lshl_b32 s{S_DST}, s{S_DST}, 4")
        e(f"s_add_u32 s{S_DST}, s{S_DST}, s{S_T1}")
        e(f"s_lshl_b32 s{S_DST}, s{S_DST}, 10")
        e(f"s_add_u32 s{S_DST}, s{S_DST}, {hex(WS_WKV)}")
        e(f"s_lshl_b32 s{S_AUG}, s{S_W4}, 10")
        e(f"s_add_u32 s{S_AUG}, s{S_AUG}, {hex(WS_AUGKV)}")
    else:
        make_srd(e, SRD_P, dict(wq=6, wo=12, w2=14)[kind], 7340032 if kind == "w2" else 1 << 21)
        e(f"s_and_b32 s{S_T1}, s{S_T3}, 15")
        e(f"s_lshr_b32 s{S_Q}, s{S_T3}, 4")
        src_off(S_T1, 2048)
        panel64(dict(wq=WS_WQ, wo=WS_WO, w2=WS_W2)[kind], 112 if kind == "w2" else 32)
        if kind == "wq":
            e(f"s_lshl_b32 s{S_AUG}, s{S_T1}, 2")
            e(f"s_add_u32 s{S_AUG}, s{S_AUG}, s{S_W4}")
            e(f"s_lshl_b32 s{S_AUG}, s{S_AUG}, 10")
            e(f"s_add_u32 s{S_AUG}, s{S_AUG}, {hex(WS_AUGQ)}")


def job_dma_setup(e):
    e(f"v_lshrrev_b32 v{JA}, 3, v0")
    e(f"v_mul_lo_u32 v{JA}, v{JA}, s{S_ROW}")
    e("v_and_b32 v5, 7, v0")
    e(f"v_lshl_add_u32 v{JA}, v5, 4, v{JA}")


def job_dma(e, lds, i0, n):
    e(f"s_lshl_b32 s{S_T0}, s{S_W4}, 13")
    e(f"s_lshl_b32 s{S_T1}, s{S_ROW}, 3")
    for i in range(i0, i0 + n):
        e(f"s_add_u32 m0, s{S_T0}, {lds + 1024*i}")
        e("s_nop 0")
        e(f"buffer_load_dwordx4 v{JA}, {sr(SRD_P,4)}, s{S_SRC} offen lds")
        e(f"s_add_u32 s{S_SRC}, s{S_SRC}, s{S_T1}")


def job_addr(e, lds):
    e("v_lshrrev_b32 v4, 4, v0")
    e("v_lshlrev_b32 v5, 2, v4")
    e("v_and_b32 v6, 1, v4")
    e("v_lshlrev_b32 v6, 4, v6")
    e("v_lshrrev_b32 v7, 1, v4")
    e("v_lshl_add_u32 v6, v7, 2, v6")
    e(f"s_cmp_eq_u32 s{S_PO}, 1")
    e(f"s_cselect_b64 {sr(S_MSK,2)}, -1, 0")
    e(f"s_cselect_b32 s{S_T2}, 8, 16")
    e(f"v_cndmask_b32 v5, v5, v6, {sr(S_MSK,2)}")
    e("v_bfe_u32 v6, v0, 2, 2")
    e("v_add_u32 v5, v5, v6")
    e(f"v_mul_lo_u32 v5, v5, s{S_LR}")
    e("v_and_b32 v6, 3, v0")
    e("v_lshl_add_u32 v5, v6, 3, v5")
    e(f"s_add_u32 s{S_T0}, s{S_CB}, {lds}")
    e(f"v_add_u32 v{JB}, s{S_T0}, v5")
    e(f"s_mul_i32 s{S_T2}, s{S_T2}, s{S_LR}")
    e(f"v_add_u32 v{JB+1}, s{S_T2}, v{JB}")
    for i in range(4):
        e(f"v_mov_b32 v{JO+i}, 0x3f803f80")


def job_process(e, aug):
    e(f"s_lshl_b32 s{S_T3}, s{S_LR}, 5")
    for i in range(8):
        e(f"ds_read_b64_tr_b16 {vr(JF+4*i,2)}, v{JB}")
        e(f"ds_read_b64_tr_b16 {vr(JF+2+4*i,2)}, v{JB+1}")
        if i < 7:
            e(f"v_add_u32 v{JB}, s{S_T3}, v{JB}")
            e(f"v_add_u32 v{JB+1}, s{S_T3}, v{JB+1}")
        if i == 5:
            e("s_waitcnt lgkmcnt(4)")
    for i in range(8):
        if i == 4:
            e("s_waitcnt lgkmcnt(0)")
        e(f"buffer_store_dwordx4 {vr(JF+4*i,4)}, v{VL16}, {WSD}, s{S_DST} offen sc1")
        e(f"s_add_u32 s{S_DST}, s{S_DST}, s{S_KBS}")
        if aug is not False:
            e(m16(JC, JO, JF + 4 * i, "0" if i == 0 else None))
    if aug is False:
        return
    no = e.label("noaug")
    if aug is None:
        e(f"s_cmp_eq_u32 s{S_AUG}, 0")
        e(f"s_cbranch_scc1 {no}")
    e("v_lshrrev_b32 v4, 4, v0")
    e(f"v_cmp_eq_u32 vcc, s{S_Q}, v4")
    e(f"v_lshl_or_b32 v{JC+7}, v14, 16, v14")
    e("s_nop 4")
    split3(e, JC, JC + 1, JC + 2, JC + 3)
    pack_hi(e, JC + 4, JC, JC)
    pack_hi(e, JC + 5, JC + 1, JC + 1)
    pack_hi(e, JC + 6, JC, JC + 2)
    e("s_mov_b64 exec, vcc")
    e(f"buffer_store_dwordx4 {vr(JC+4,4)}, v{VL16}, {WSD}, s{S_AUG} offen sc1")
    e("s_mov_b64 exec, -1")
    e(f"{no}:")


def helper_attention(e, jobs):
    q = [("kv", 1)] * 4

    def need(tags):
        idx = [i for i, t in enumerate(q) if t in tags]
        return len(q) - 1 - max(idx) if idx else None

    def kv(c):
        e(f"s_add_u32 m0, s{S_M0}, {LDS_RING + SLOT(c)}")
        e(f"s_add_u32 s{S_T0}, s{S_M0}, {c*16384}")
        for i in range(4):
            e(f"buffer_load_dwordx4 v{VL16}, {sr(SRD_KV,4)}, s{S_T0} offen offset:{1024*i} sc1 lds")
        q.extend([("kv", c)] * 4)

    def wo(p):
        dma_run(e, 4, p * 16 * K1 + (32 * K1 if p >= 6 else 0))
        e(f"s_add_u32 s{S_WOFF}, s{S_WOFF}, 16384")
        q.extend([("wo", p)] * 4)

    def jd(j, i0):
        if i0 == 0:
            job_params(e, ("w1", "w2")[j], 0)
            job_dma_setup(e)
        job_dma(e, j * 32 * K1, i0, 2)
        q.extend([("job", j)] * 2)

    e(f"s_mul_i32 s{S_WOFF}, s{S_CT}, {pstr(32)}")
    e(f"s_add_u32 s{S_WOFF}, s{S_WOFF}, s{S_M0}")
    e(f"s_add_u32 s{S_WOFF}, s{S_WOFF}, {hex(WS_WO)}")
    kv(2)
    if jobs:
        jd(0, 0)
        e("v_and_b32 v6, 15, v0")
        e("v_lshlrev_b32 v6, 1, v6")
        e(f"buffer_load_ushort v14, v6, {sr(SRD_B1,4)}, s{S_BIAS} offen")
        q.append(("job", 0))
    for c in range(16):
        tags = [("kv", c + 1)]
        if jobs and c in (7, 9):
            tags.append(("job", (c - 7) // 2))
        if jobs and c == 12:
            tags.append(("st", 0))
        n = need(tags)
        if n is not None:
            e(f"s_waitcnt vmcnt({n})")
        e("s_barrier")
        if c + 3 < 16:
            kv(c + 3)
        if 8 <= c <= 13:
            wo(c - 8)
        if c in (13, 14):
            wo(c - 7)
        if jobs:
            if c < 7:
                jd((c + 1) // 4, 2 * ((c + 1) % 4))
            if c in (7, 9):
                j = (c - 7) // 2
                job_params(e, ("w1", "w2")[j], 0)
                job_addr(e, j * 32 * K1)
                job_process(e, j == 0)
                q.extend([("st", 0)] * (9 - j))
        if c == 12:
            no = e.label("nod")
            e(f"s_add_u32 s{S_T0}, s{S_W4}, s{S_LAYER}")
            e(f"s_cmp_lg_u32 s{S_T0}, 0")
            e(f"s_cbranch_scc1 {no}")
            signal(e, C_D, S_RB)
            fan_out(e, C_D2, 16)
            e(f"{no}:")


def main_kernel(e):
    done = e.label("done")
    e(f"s_load_dwordx4 s[4:7], s[0:1], {ARG['x']}")
    e(f"s_load_dwordx4 s[96:99], s[0:1], {ARG['dbg']}")
    e(f"s_load_dwordx4 s[8:11], s[0:1], {ARG['wk']}")
    e(f"s_load_dwordx2 s[12:13], s[0:1], {ARG['wo']}")
    e(f"s_load_dwordx4 s[16:19], s[0:1], {ARG['w1']}")
    e(f"s_load_dwordx2 s[14:15], s[0:1], {ARG['w2']}")
    e(f"s_load_dwordx4 s[92:95], s[0:1], {ARG['b2']}")
    e("s_cmp_ge_u32 s2, 256")
    e(f"s_cbranch_scc1 {done}")
    e("v_lshrrev_b32 v4, 6, v0")
    e("v_and_b32 v0, 63, v0")
    e(f"v_readfirstlane_b32 s{S_WAVE}, v4")
    e(f"v_lshlrev_b32 v{VL16}, 4, v0")
    e(f"v_mov_b32 v{VZ}, 0")
    e(f"v_mov_b32 v{VST}, 0")
    e(f"s_and_b32 s{S_T0}, s2, 7")
    e(f"s_lshr_b32 s{S_T1}, s2, 3")
    e(f"s_lshr_b32 s{S_RB}, s{S_T0}, 1")
    e(f"s_lshl_b32 s{S_RB}, s{S_RB}, 2")
    e(f"s_and_b32 s{S_T2}, s{S_T1}, 3")
    e(f"s_add_u32 s{S_RB}, s{S_RB}, s{S_T2}")
    e(f"s_lshr_b32 s{S_CT}, s{S_T1}, 2")
    e(f"s_lshl_b32 s{S_CT}, s{S_CT}, 1")
    e(f"s_and_b32 s{S_T2}, s{S_T0}, 1")
    e(f"s_add_u32 s{S_CT}, s{S_CT}, s{S_T2}")
    e(f"s_and_b32 s{S_W4}, s{S_WAVE}, 3")
    e(f"s_lshl_b32 s{S_RT}, s{S_RB}, 2")
    e(f"s_add_u32 s{S_RT}, s{S_RT}, s{S_W4}")
    e(f"s_mov_b32 s{S_SEL}, 0x07060302")
    e(f"s_mov_b32 s{S_MASK}, 0xffff0000")
    e(f"s_mov_b32 s{S_L}, {hex(LBASE)}")
    e(f"s_mov_b32 s{S_LAYER}, 0")
    e("s_waitcnt lgkmcnt(0)")
    make_srd(e, SRD_WS, 98, WS_SIZE)
    make_srd(e, SRD_DBG, 96, 256)
    e(f"s_add_u32 s98, s98, {hex(LBASE + L_KV)}")
    e("s_addc_u32 s99, s99, 0")
    make_srd(e, SRD_KV, 98, 262144)
    stamp(e, 0)
    c_top, l_top, l_init = (e.label(x) for x in ("ctop", "ltop", "linit"))
    e(f"s_cmp_ge_u32 s{S_WAVE}, 4")
    e(f"s_cbranch_scc1 {l_init}")

    make_srd(e, SRD_P, 4, 1 << 22)
    rm_voff(e, 8, 9)
    e("v_add_u32 v9, 0x8000, v8")
    for up in range(2):
        for a in range(2):
            e(f"buffer_load_dwordx4 {vr(16+8*up+4*a,4)}, v{8+a}, {sr(SRD_P,4)}, 0 offen offset:{64*up}")
    make_srd(e, SRD_B, 92, 2048)
    make_srd(e, SRD_OUT, 94, 1 << 22)
    tf_soff(e, S_T0, L_X, 32, 2)
    e(f"s_add_u32 s{S_T1}, s{S_T0}, 8192")
    e("s_waitcnt vmcnt(0)")
    for up in range(2):
        for a in range(2):
            b = 16 + 8 * up + 4 * a
            for r in range(2):
                e(f"v_permlane16_swap_b32 v{b+r}, v{b+2+r}")
            e(f"buffer_store_dwordx4 {vr(b,4)}, v{VL16}, {WSD}, s{S_T0+up} offen offset:{1024*a} sc1")
    e("s_barrier")
    for up in range(2):
        for a in range(2):
            b = 16 + 8 * up + 4 * a
            for u in range(2):
                for r in range(2):
                    s, d = b + 2 * u + r, RES + 16 * up + 8 * u + 4 * a + 2 * r
                    e(f"v_lshlrev_b32 v{d}, 16, v{s}")
                    e(f"v_and_b32 v{d+1}, s{S_MASK}, v{s}")
    stats_out(e, RES, 32, L_STA)
    wait_init(e)
    signal(e, C_X, S_RT)
    e("s_barrier")

    e(f"{c_top}:")
    QACC, AUGW, ST, XA = 176, 144, 160, 208
    e(f"s_lshl_b32 s{S_T0}, s{S_CT}, 12")
    e(f"s_add_u32 s{S_T0}, s{S_T0}, {hex(WS_AUGQ)}")
    for u in range(4):
        e(f"buffer_load_dwordx4 {vr(AUGW+4*u,4)}, v{VL16}, {WSD}, s{S_T0} offen offset:{1024*u} sc1")
    for i in range(32):
        e(f"v_mov_b32 v{QACC+i}, 0")
    tf_soff(e, S_AOFF, L_X, 32, 0)
    poll(e, 16, True)
    e("s_barrier")
    stamp(e, 1)
    DAQ = CFG.get("da_q", 5)
    fill = Rec()
    fill(f"s_waitcnt vmcnt({2*max(0, min(3, 31 - 22 - DAQ + 1))})")
    ln_scalars(fill, ST, False)
    xaug(fill, ST, XA, False)
    fill(f"v_mul_f32 v{ST+4}, {hexf(LOG2E * 32 ** -0.5)}, v{ST+3}")
    spread(fill, [(ST + 4, ST + 5)])
    resident_gemm(e, QACC, 4 * CFG.get("bp", 24), DAQ, 0, lambda: stats_loads(e, ST, L_STA, S_RT, 4), 16, fill)
    e("s_nop 1")
    for u in range(4):
        for a in range(2):
            e(m16(QACC + 8 * u + 4 * a, AUGW + 4 * u, XA + 4 * a))
    stamp(e, 2)
    e("s_nop 1")
    for u in range(4):
        for a in range(2):
            for r in range(2):
                x = QACC + 8 * u + 4 * a + 2 * r
                e(f"v_pk_mul_f32 {vr(x,2)}, {vr(x,2)}, {vr(ST+4,2)} op_sel:[0,{a}] op_sel_hi:[1,{a}]")
    for hd in range(2):
        pack_pair(e, QACC + 16 * hd, AQ + 8 * hd)
    e("s_nop 1")
    for hd in range(2):
        for r in range(4):
            e(f"v_permlane16_swap_b32 v{AQ+8*hd+r}, v{AQ+8*hd+4+r}")
    slow_path = attention(e)
    stamp(e, 5)
    e("s_barrier")

    tf_soff(e, S_AOFF, L_O, 32, 0)
    poll(e, 16, True)
    stamp(e, 6)
    resident_gemm(e, RES, None, CFG.get("da_o", 8), 32 * K1)
    stamp(e, 7)
    tf_soff(e, S_T0, L_X1, 32, 2)
    e(f"s_add_u32 s{S_T1}, s{S_T0}, 8192")
    e("s_nop 0")
    for up in range(2):
        pack_pair(e, RES + 16 * up, 16 + 8 * up)
        for a in range(2):
            e(f"buffer_store_dwordx4 {vr(16+8*up+4*a,4)}, v{VL16}, {WSD}, s{S_T0+up} offen offset:{1024*a} sc1")
    stats_out(e, RES, 32, L_STB)
    e("s_barrier")
    signal(e, C_X1, S_RT)

    ACC, AR, WR, ST, XA = 16, 128, 160, 188, 204
    for i in range(112):
        e(f"v_mov_b32 v{ACC+i}, 0")
    tf_soff(e, S_AOFF, L_X1, 32, 0)
    poll(e, 16, True)
    stamp(e, 8)
    c0 = -2.0 * math.sqrt(2.0 / math.pi) * LOG2E
    c1 = c0 * 0.044715
    GK0, GK1, GIN = 212, 214, 216
    fill = Rec()
    fill("s_waitcnt vmcnt(0)")
    ln_scalars(fill, ST, True)
    xaug(fill, ST, XA, True)
    fill(f"v_mul_f32 v{GK0}, {hexf(c0)}, v{ST+3}")
    fill(f"v_mul_f32 v{GK1}, v{ST+3}, v{ST+3}")
    fill(f"v_mul_f32 v{GK1}, v{GK1}, v{ST+3}")
    fill(f"v_mul_f32 v{GK1}, {hexf(c1)}, v{GK1}")
    fill(f"v_mov_b32 v{GIN}, v{ST+6}")
    spread(fill, [(GK0, GK0 + 1), (GK1, GK1 + 1), (GIN, GIN + 1)])
    d = DLoop(ACC, 14, AR, 4, WR, 7, CFG.get("la_w1", 4))
    ring_gemm(e, d, 2, 16, 5, 6, True, lambda: stats_loads(e, ST, L_STB, S_RT, 4), 16, fill, XA)
    e("s_barrier")
    stamp(e, 9)
    tf_soff(e, S_T0, L_H, 112, 7)
    T = AR
    for j in range(7):
        a0 = ACC + 16 * j
        sel = lambda i: (i // 4) % 2
        for i in range(0, 16, 2):
            e(f"v_pk_mul_f32 {vr(T+i,2)}, {vr(a0+i,2)}, {vr(a0+i,2)}")
        for i in range(0, 16, 2):
            a = sel(i)
            e(f"v_pk_fma_f32 {vr(T+i,2)}, {vr(T+i,2)}, {vr(GK1,2)}, {vr(GK0,2)} op_sel:[0,{a},{a}] op_sel_hi:[1,{a},{a}]")
        for i in range(0, 16, 2):
            e(f"v_pk_mul_f32 {vr(T+i,2)}, {vr(T+i,2)}, {vr(a0+i,2)}")
        for i in range(16):
            e(f"v_exp_f32 v{T+i}, v{T+i}")
        for i in range(0, 16, 2):
            a = sel(i)
            e(f"v_pk_fma_f32 {vr(T+i,2)}, {vr(T+i,2)}, {vr(GIN,2)}, {vr(GIN,2)} op_sel:[0,{a},{a}] op_sel_hi:[1,{a},{a}]")
        for i in range(16):
            e(f"v_rcp_f32 v{T+i}, v{T+i}")
        for i in range(0, 16, 2):
            e(f"v_pk_mul_f32 {vr(a0+i,2)}, {vr(T+i,2)}, {vr(a0+i,2)}")
        P = WR + 8 * (j % 2)
        pack_pair(e, a0, P)
        for a in range(2):
            e(f"buffer_store_dwordx4 {vr(P+4*a,4)}, v{VL16}, {WSD}, s{S_T0} offen offset:{1024*a} sc1")
        e(f"s_add_u32 s{S_T0}, s{S_T0}, 8192")
    stamp(e, 10)
    signal(e, C_H, S_RT)

    BF = 128
    e(f"s_lshl_b32 s{S_T0}, s{S_CT}, 7")
    e("v_and_b32 v4, 15, v0")
    e("v_lshlrev_b32 v4, 1, v4")
    for u in range(4):
        e(f"buffer_load_ushort v{BF+4*u}, v4, {sr(SRD_B,4)}, s{S_T0} offen offset:{32*u}")
        for i in range(1, 4):
            e(f"v_mov_b32 v{BF+4*u+i}, 0")
    e("v_cmp_gt_u32 vcc, 16, v0")
    e("v_mov_b32 v6, 0x3f80")
    for i in range(1, 4):
        e(f"v_mov_b32 v{BF+16+i}, 0")
    e(f"v_cndmask_b32 v{BF+16}, 0, v6, vcc")
    tf_soff(e, S_AOFF, L_H, 112, 0)
    poll(e, 16, True)
    stamp(e, 11)
    for u in range(4):
        for a in range(2):
            e(m16(RES + 8 * u + 4 * a, BF + 4 * u, BF + 16))
    d = DLoop(RES, 4, 16, 7, 72, 7, CFG.get("la_w2", 4))
    ring_gemm(e, d, 7, 16, 5, 6, False)
    stamp(e, 12)
    last = e.label("last")
    e(f"s_cmp_lg_u32 s{S_LAYER}, 0")
    e(f"s_cbranch_scc1 {last}")
    tf_soff(e, S_T0, L_X, 32, 2, True)
    e(f"s_add_u32 s{S_T1}, s{S_T0}, 8192")
    for up in range(2):
        pack_pair(e, RES + 16 * up, 16 + 8 * up)
        for a in range(2):
            e(f"buffer_store_dwordx4 {vr(16+8*up+4*a,4)}, v{VL16}, {WSD}, s{S_T0+up} offen offset:{1024*a} sc1")
    stats_out(e, RES, 32, L_STA, True)
    e("s_barrier")
    signal(e, C_X, S_RT, True)

    def next_layer():
        e(f"s_mov_b32 s{S_LAYER}, 1")
        e(f"s_add_u32 s{S_L}, s{S_L}, {hex(LSTRIDE)}")
        e(f"s_add_u32 s{SRD_KV}, s{SRD_KV}, {hex(LSTRIDE)}")
        e(f"s_addc_u32 s{SRD_KV+1}, s{SRD_KV+1}, 0")

    stamp(e, 13)
    next_layer()
    e(f"s_branch {c_top}")
    e(f"{last}:")
    rm_voff(e, 4, 5)
    e("v_add_u32 v5, 0x8000, v4")
    for up in range(2):
        pack_pair(e, RES + 16 * up, 16 + 8 * up)
    e("s_nop 1")
    for up in range(2):
        for a in range(2):
            b = 16 + 8 * up + 4 * a
            for r in range(2):
                e(f"v_permlane16_swap_b32 v{b+r}, v{b+2+r}")
            e(f"buffer_store_dwordx4 {vr(b,4)}, v{4+a}, {sr(SRD_OUT,4)}, 0 offen offset:{64*up}")
    if CFG.get("stamps"):
        e("s_waitcnt vmcnt(0)")
    stamp(e, 13)
    stamp_flush(e)
    e("s_endpgm")

    e(f"{l_init}:")
    make_srd(e, SRD_B1, 18, 7168)
    jq, jo, jk, go, nojob, s2 = (e.label(x) for x in ("jq", "jo", "jk", "go", "nojob", "s2"))
    e("s_cmp_ge_u32 s2, 132")
    e(f"s_cbranch_scc1 {nojob}")
    e("s_cmp_ge_u32 s2, 68")
    e(f"s_cbranch_scc1 {jo}")
    e("s_cmp_ge_u32 s2, 64")
    e(f"s_cbranch_scc1 {jk}")
    job_params(e, "wq", 0)
    e(f"s_branch {go}")
    e(f"{jk}:")
    job_params(e, "kv", 64)
    e(f"s_branch {go}")
    e(f"{jo}:")
    job_params(e, "wo", 68)
    e(f"{go}:")
    e(f"s_mov_b32 s{S_CNT}, s{S_T1}")
    job_dma_setup(e)
    job_dma(e, 0, 0, 8)
    job_addr(e, 0)
    e("v_mov_b32 v14, 0")
    e("s_waitcnt vmcnt(0)")
    e("s_barrier")
    job_process(e, None)
    wait_init(e)
    iskv = e.label("iskv")
    e(f"s_cmp_eq_u32 s{S_LR}, 64")
    e(f"s_cbranch_scc1 {iskv}")
    signal(e, C_W, S_CNT)
    e(f"s_branch {s2}")
    e(f"{iskv}:")
    add16(e, C_W)
    e(f"s_branch {s2}")
    e(f"{nojob}:")
    noz = e.label("noz")
    e(f"s_lshl_b32 s{S_T0}, s2, 3")
    e(f"s_add_u32 s{S_T0}, s{S_T0}, s{S_WAVE}")
    e(f"s_cmp_lg_u32 s{S_T0}, {132*8 + 7}")
    e(f"s_cbranch_scc1 {noz}")
    e(f"v_mul_u32_u24 v4, {CSTR}, v0")
    for layer in range(2):
        for i in range(NCNT // 64):
            e(f"s_mov_b32 s{S_T0}, {hex(LBASE + layer*LSTRIDE + L_CNT + i*64*CSTR)}")
            e(f"buffer_store_dword v{VZ}, v4, {WSD}, s{S_T0} offen sc1")
    e("v_mov_b32 v5, 1")
    e("s_waitcnt vmcnt(0)")
    e("s_mov_b64 exec, 1")
    e(f"buffer_store_dword v5, v{VZ}, {sr(SRD_DBG,4)}, 0 offen sc1")
    e("s_mov_b64 exec, -1")
    e(f"{noz}:")
    e("s_barrier")
    e(f"{s2}:")
    nop = e.label("nop")
    e(f"s_cmp_lg_u32 s{S_W4}, 0")
    e(f"s_cbranch_scc1 {nop}")
    wait_init(e)
    cnt_off(e, S_T5, C_W, S_CT)
    poll(e, 48, False)
    e(f"{nop}:")
    e("s_barrier")
    e(f"s_and_b32 s{S_T0}, s{S_CT}, 1")
    e(f"s_lshl_b32 s{S_T0}, s{S_T0}, 2")
    e(f"s_add_u32 s{S_T0}, s{S_T0}, s{S_W4}")
    e(f"s_lshl_b32 s{S_T0}, s{S_T0}, 14")
    e(f"s_add_u32 s{S_T0}, s{S_T0}, {hex(WS_WKV)}")
    for f in range(16):
        e(f"buffer_load_dwordx4 {vr(WKV+4*f,4)}, v{VL16}, {WSD}, s{S_T0} offen offset:{1024*(f % 4)} sc1")
        if f % 4 == 3:
            e(f"s_add_u32 s{S_T0}, s{S_T0}, 4096")

    e(f"{l_top}:")
    e(f"s_lshl_b32 s{S_M0}, s{S_W4}, 12")
    e(f"s_mul_i32 s{S_WOFF}, s{S_CT}, {pstr(32)}")
    e(f"s_add_u32 s{S_WOFF}, s{S_WOFF}, s{S_M0}")
    for i in range(8):
        dma_run(e, 4, 16 * K1 * i, CFG.get("thr_pre"))
        e(f"s_add_u32 s{S_WOFF}, s{S_WOFF}, 0x4000")
    e(f"v_mov_b32 v5, {LDS_KVX + 10*K1}")
    e(f"ds_write_b32 v5, v{VZ}")
    e("s_waitcnt vmcnt(0) lgkmcnt(0)")
    e("s_barrier")
    stamp(e, 1)
    e("s_setprio 2")
    kv_piece(e)
    e("s_setprio 0")
    stamp(e, 2)
    e("s_barrier")
    cnt_off(e, S_T5, C_KV2, S_RT)
    poll(e, 16, False)
    for c in range(2):
        e(f"s_add_u32 m0, s{S_M0}, {LDS_RING + SLOT(c)}")
        e(f"s_add_u32 s{S_T0}, s{S_M0}, {c*16384}")
        for i in range(4):
            e(f"buffer_load_dwordx4 v{VL16}, {sr(SRD_KV,4)}, s{S_T0} offen offset:{1024*i} sc1 lds")
    e("s_waitcnt vmcnt(4)")
    e("s_barrier")
    stamp(e, 3)
    plain, hend = e.label("plain"), e.label("hend")
    e(f"s_cmp_lg_u32 s{S_LAYER}, 0")
    e(f"s_cbranch_scc1 {plain}")
    e("s_cmp_ge_u32 s2, 224")
    e(f"s_cbranch_scc1 {plain}")
    helper_attention(e, True)
    e(f"s_branch {hend}")
    e(f"{plain}:")
    helper_attention(e, False)
    e(f"{hend}:")
    nod = e.label("nod")
    e(f"s_add_u32 s{S_T0}, s{S_W4}, s{S_LAYER}")
    e(f"s_cmp_lg_u32 s{S_T0}, 0")
    e(f"s_cbranch_scc1 {nod}")
    cnt_off(e, S_T5, C_D2, S_RB)
    poll(e, 16, False)
    e(f"{nod}:")
    e("s_waitcnt vmcnt(0)")
    e("s_barrier")
    e("s_barrier")
    ring_loader(e, WS_W1, 33 * 14 * K1, 16, 5, True)
    e("s_barrier")
    ring_loader(e, WS_W2, pstr(112), 16, 5, False)
    lend = e.label("lend")
    e(f"s_cmp_lg_u32 s{S_LAYER}, 0")
    e(f"s_cbranch_scc1 {lend}")
    e("s_barrier")
    next_layer()
    e(f"s_branch {l_top}")
    e(f"{lend}:")
    stamp_flush(e)
    e(f"{done}:")
    e("s_endpgm")
    slow_path()


def descriptor(name, vgpr):
    acc = (vgpr + 3) // 4 * 4
    return f""".amdhsa_kernel {name}
  .amdhsa_next_free_vgpr {vgpr}
  .amdhsa_next_free_sgpr 102
  .amdhsa_accum_offset {acc}
  .amdhsa_group_segment_fixed_size 0
  .amdhsa_kernarg_size 104
  .amdhsa_user_sgpr_count 2
  .amdhsa_user_sgpr_kernarg_segment_ptr 1
  .amdhsa_system_sgpr_workgroup_id_x 1
.end_amdhsa_kernel"""


def build(cfg=None):
    CFG.clear()
    CFG.update(cfg or {})
    e = Asm()
    kernels = []

    def start(name, vgpr):
        e(f".globl {name}")
        e(".p2align 8")
        e(f".type {name},@function")
        e(f"{name}:")
        kernels.append((name, vgpr))

    e('.amdgcn_target "amdgcn-amd-amdhsa--gfx950"')
    e(".text")
    start(NAME + "_kernel", 256)
    main_kernel(e)
    e('.section .rodata,"a"')
    for name, vgpr in kernels:
        e(".p2align 6")
        e.l.append(descriptor(name, vgpr))
    head = ["; MQA attention + channel MLP, two interleaved layers in one persistent launch (generated by a script)",
            "; @launch grid=(256,1,1) block=(512,1,1) lds=163840"]
    return "\n".join(head) + "\n" + e.text() + "\n"


if __name__ == "__main__":
    out = sys.argv[1] if len(sys.argv) > 1 else f"cdna_kernels/{NAME}.s"
    cfg = eval(sys.argv[2]) if len(sys.argv) > 2 else {}
    open(out, "w").write(build(cfg))
    print("wrote", out)
```
